```python
import torch

def _softmax(x, axis=-1):
    return torch.softmax(x, dim=axis)
def _gelu(x):
    return torch.nn.functional.gelu(x, approximate="tanh")
def _silu(x):
    return torch.nn.functional.silu(x)
def _sigmoid(x):
    return torch.sigmoid(x)
def _layernorm(x, axis=-1, eps=1e-5):
    m = x.mean(dim=axis, keepdim=True)
    v = x.var(dim=axis, keepdim=True, unbiased=False)
    return (x - m) / torch.sqrt(v + eps)
def _scatter_add(tgt, idx, src, axis=0):
    return tgt.clone().index_add_(axis, idx, src)
def _segment_sum(src, seg, n):
    out = torch.zeros((n,) + src.shape[1:], dtype=src.dtype)
    return out.index_add_(0, seg, src)
def _pad(x, pw):
    flat = tuple(v for pair in reversed(pw) for v in pair)
    return torch.nn.functional.pad(x, flat)

kernel_name = 'standalone__gqa_softmax__near_ridge'

def setup_inputs():

    _w = (lambda a: (lambda t: t.to(torch.bfloat16) if t.is_floating_point() else t)(torch.as_tensor(a)))
    B, Hq, Hkv, Sq, Sk, D = 8, 32, 32, 256, 2048, 128
    return {
        "q": _w((lambda *s: torch.randn(*s, dtype=torch.bfloat16) * 0.8)(B, Hq, Sq, D)),
        "k": _w((lambda *s: torch.randn(*s, dtype=torch.bfloat16) * 0.8)(B, Hkv, Sk, D)),
        "v": _w((lambda *s: torch.randn(*s, dtype=torch.bfloat16) * 0.05)(B, Hkv, Sk, D)),
    }

def reference(q, k, v):
    B, Hq, Sq, D = q.shape
    Hkv = k.shape[1]
    rep = Hq // Hkv
    k = (lambda x, n, axis: torch.repeat_interleave(x, n, dim=axis))(k, rep, axis=1)
    v = (lambda x, n, axis: torch.repeat_interleave(x, n, dim=axis))(v, rep, axis=1)
    scale = D ** -0.5
    scores = torch.einsum("bhqd,bhkd->bhqk", q, k) * scale
    p = _softmax(scores, axis=-1)
    return torch.einsum("bhqk,bhkd->bhqd", p, v)
```

```python
import sys, argparse, struct

def f32bits(x): return struct.unpack('<I', struct.pack('<f', x))[0]

class I:
    __slots__ = ('t', 'k', 'r', 'w', 'cost', 'c')
    def __init__(s, t, k, r=(), w=(), cost=4, c=()):
        s.t = t; s.k = k; s.r = set(r); s.w = set(w); s.cost = cost; s.c = set(c)

def vr(b, n=1): return ['v%d' % i for i in range(b, b + n)]
def ar(b, n=1): return ['a%d' % i for i in range(b, b + n)]
def vs(b, n): return 'v[%d:%d]' % (b, b + n - 1) if n > 1 else 'v%d' % b
def as_(b, n): return 'a[%d:%d]' % (b, b + n - 1) if n > 1 else 'a%d' % b

def O(q, b): return 64 * q + 16 * b
def S(buf, q): return 128 + 32 * buf + 16 * q
def CI(q): return 192 + 16 * q
V_KADDR, V_VADDR, V_KBASE, V_VBASE = 224, 225, 226, 227
V_DMA = 228
V_L = 232
V_LS = 234
V_MX = 236
V_F = 238
V_T = 240
V_TID = 248
V_STAMP = 249
def AQ(q, s): return 32 * q + 4 * s
def AK(s): return 64 + 4 * s
def AV(sp, b): return 96 + 4 * (4 * sp + b)
NA = 128
S_K, S_V, S_Q, S_O = 8, 12, 16, 20
S_PREV, S_CUR, S_NEXT, S_WK, S_WV, S_SO, S_T, S_T2, S_W, S_TMP, S_TMP2, S_C = 24, 25, 26, 27, 28, 29, 30, 31, 32, 33, 34, 35
S_TS = 36
S_WS = 40
S_IT = 44
KP = 1040
KSLOT = 16 * KP
SLOT = KSLOT + 16384
QREG = 2 * SLOT + KSLOT
LDS_BYTES = QREG + 4 * KSLOT
THRESH = 8.0
CSCALE = 1.4426950408889634 / (128 ** 0.5)

def mfma(d, a, b, c, a_acc=True, b_acc=False):
    A = as_(a, 4) if a_acc else vs(a, 4)
    B = as_(b, 4) if b_acc else vs(b, 4)
    rd = (ar(a, 4) if a_acc else vr(a, 4)) + (ar(b, 4) if b_acc else vr(b, 4))
    if c is None:
        return I('v_mfma_f32_32x32x16_bf16 %s, %s, %s, 0' % (vs(d, 16), A, B), 'mfma', rd, vr(d, 16), 8)
    return I('v_mfma_f32_32x32x16_bf16 %s, %s, %s, %s' % (vs(d, 16), A, B, vs(c, 16)), 'mfma', rd, vr(d, 16), 8, vr(c, 16))
def valu(t, r, w): return I(t, 'valu', r, w, 4)
def trans(t, r, w): return I(t, 'trans', r, w, 8)
def salu(t): return I(t, 'salu', (), (), 4)
def raw(t, cost=4): return I(t, 'other', (), (), cost)
def label(n): return I(n + ':', 'label', (), (), 0)
def nop(n): return I('s_nop %d' % n, 'nop', (), (), 4 * (n + 1))

def kread(s, kb, dst_acc=True, dst=None, addr=V_KADDR):
    off = kb * 8 * KP + (s >> 1) * 256 + (s & 1) * 32
    if dst is None: dst = AK(s)
    D = as_(dst, 4) if dst_acc else vs(dst, 4)
    return I('ds_read_b128 %s, v%d offset:%d' % (D, addr, off), 'ds', vr(addr), ar(dst, 4) if dst_acc else vr(dst, 4))
def vread(half, sp, b, x):
    s2 = 2 * half + sp
    off = (4 * s2 + 2 * x) * 1024 + b * 256
    dst = AV(sp, b) + 2 * x
    return I('ds_read_b64_tr_b16 %s, v%d offset:%d' % (as_(dst, 2), V_VADDR, off), 'ds', vr(V_VADDR), ar(dst, 2))
def dma(kind, n, so, pol):
    if kind == 'k':
        return I('buffer_load_dwordx4 v%d, s[%d:%d], s%d offen offset:%d %slds' % (V_DMA + n, S_K, S_K + 3, so, n * KP, pol), 'vmem', vr(V_DMA + n))
    if kind == 'q':
        return I('buffer_load_dwordx4 v%d, s[%d:%d], s%d offen offset:%d %slds' % (V_DMA + n, S_Q, S_Q + 3, so, n * KP, pol), 'vmem', vr(V_DMA + n))
    return I('buffer_load_dwordx4 v%d, s[%d:%d], s%d offen offset:%d %slds' % (V_DMA, S_V, S_V + 3, so, n * 1024, pol), 'vmem', vr(V_DMA))

def qk_mfmas(buf, first=False):
    out = []
    for s in range(8):
        for q in range(2):
            c = S(buf, q) if s else (None if first else CI(q))
            out.append(mfma(S(buf, q), AK(s), AQ(q, s), c, True, True))
    return out
def pv_mfmas(buf):
    out = []
    for sp in range(2):
        for b in range(4):
            for q in range(2):
                out.append(mfma(O(q, b), AV(sp, b), S(buf, q) + 8 * sp, O(q, b), True, False))
    return out

def max_tree(buf):
    out = []
    a, b = S(buf, 0), S(buf, 1)
    m0, m1 = V_MX, V_MX + 1
    def m3(d, x, y, z): return valu('v_max3_f32 v%d, v%d, v%d, v%d' % (d, x, y, z), vr(x) + vr(y) + vr(z), vr(d))
    out.append(m3(m0, a, a + 1, a + 2)); out.append(m3(m1, b, b + 1, b + 2))
    for i in range(6):
        out.append(m3(m0, m0, a + 3 + 2 * i, a + 4 + 2 * i)); out.append(m3(m1, m1, b + 3 + 2 * i, b + 4 + 2 * i))
    out.append(m3(m0, m0, a + 15, b + 15))
    out.append(valu('v_max_f32 v%d, v%d, v%d' % (m0, m0, m1), vr(m0) + vr(m1), vr(m0)))
    return out

def e_stream(buf):
    ops = []
    seq = []
    for sp in range(2):
        for q in range(2):
            for j in range(8):
                seq.append((q, sp, j))
    def ex(q, sp, j):
        r = S(buf, q) + 8 * sp + j
        return trans('v_exp_f32 v%d, v%d' % (r, r), vr(r), vr(r))
    def post(q, sp, j):
        r = S(buf, q) + 8 * sp + j
        o = []
        ls = V_LS + q
        if sp == 0 and j == 0:
            pass
        elif sp == 0 and j == 1:
            o.append(valu('v_add_f32 v%d, v%d, v%d' % (ls, r - 1, r), vr(r - 1) + vr(r), vr(ls)))
        else:
            o.append(valu('v_add_f32 v%d, v%d, v%d' % (ls, ls, r), vr(ls) + vr(r), vr(ls)))
        if j & 1:
            d = S(buf, q) + 8 * sp + (j >> 1)
            o.append(valu('v_cvt_pk_bf16_f32 v%d, v%d, v%d' % (d, r - 1, r), vr(r - 1) + vr(r), vr(d)))
        if sp == 1 and j == 7:
            o.append(valu('v_add_f32 v%d, v%d, v%d' % (V_L + q, V_L + q, ls), vr(V_L + q) + vr(ls), vr(V_L + q)))
        return o
    LAG = 1
    for i in range(len(seq) + LAG):
        if i < len(seq): ops.append(ex(*seq[i]))
        if i >= LAG: ops += post(*seq[i - LAG])
    return ops

def build(opt):
    pol = 'nt ' if opt.nt else ''
    P = []
    def e(x): P.append(x)
    e(raw('s_cmp_ge_u32 s2, 256')); e(raw('s_cbranch_scc1 L_end'))
    e(raw('s_load_dwordx4 s[4:7], s[0:1], 0'))
    e(raw('s_load_dwordx4 s[44:47], s[0:1], 16'))
    if opt.stamp: e(raw('s_load_dwordx2 s[48:49], s[0:1], 40'))
    if opt.stamp: e(raw('s_memtime s[50:51]'))
    e(valu('v_mov_b32 v%d, v0' % V_TID, ['v0'], vr(V_TID)))
    e(valu('v_lshrrev_b32 v1, 6, v0', ['v0'], ['v1']))
    e(valu('v_and_b32 v2, 63, v0', ['v0'], ['v2']))
    e(raw('v_readfirstlane_b32 s%d, v1' % S_W))
    e(valu('v_bfe_u32 v3, v2, 2, 2', ['v2'], ['v3']))
    e(valu('v_lshlrev_b32 v3, 8, v3', ['v3'], ['v3']))
    e(valu('v_lshrrev_b32 v4, 4, v2', ['v2'], ['v4']))
    e(valu('v_lshl_add_u32 v3, v4, 6, v3', ['v3', 'v4'], ['v3']))
    e(valu('v_and_b32 v4, 3, v2', ['v2'], ['v4']))
    e(valu('v_lshl_add_u32 v3, v4, 4, v3', ['v3', 'v4'], ['v3']))
    e(valu('v_lshl_add_u32 v3, v1, 12, v3', ['v3', 'v1'], ['v3']))
    for n in range(4):
        e(valu('v_add_u32 v%d, %d, v3' % (V_DMA + n, 64 - 16 * n), ['v3'], vr(V_DMA + n)))
    e(valu('v_bfe_u32 v3, v2, 2, 3', ['v2'], ['v3']))
    e(valu('v_mul_u32_u24 v3, %d, v3' % KP, ['v3'], ['v3']))
    e(valu('v_lshl_add_u32 v3, v4, 6, v3', ['v3', 'v4'], ['v3']))
    e(valu('v_lshrrev_b32 v5, 5, v2', ['v2'], ['v5']))
    e(valu('v_lshl_add_u32 v%d, v5, 4, v3' % V_KBASE, ['v3', 'v5'], vr(V_KBASE)))
    e(valu('v_bfe_u32 v3, v2, 2, 2', ['v2'], ['v3']))
    e(valu('v_lshlrev_b32 v3, 6, v3', ['v3'], ['v3']))
    e(valu('v_lshl_add_u32 v3, v5, 10, v3', ['v3', 'v5'], ['v3']))
    e(valu('v_bfe_u32 v6, v2, 4, 1', ['v2'], ['v6']))
    e(valu('v_lshl_add_u32 v3, v6, 5, v3', ['v3', 'v6'], ['v3']))
    e(valu('v_lshl_add_u32 v3, v4, 3, v3', ['v3', 'v4'], ['v3']))
    e(valu('v_add_u32 v%d, %d, v3' % (V_VBASE, KSLOT), ['v3'], vr(V_VBASE)))
    e(salu('s_mul_i32 s%d, s%d, %d' % (S_WK, S_W, 4 * KP)))
    e(salu('s_lshl_b32 s%d, s%d, 12' % (S_WV, S_W)))
    e(salu('s_add_u32 s%d, s%d, %d' % (S_WV, S_WV, KSLOT)))
    e(salu('s_lshl_b32 s%d, s2, 19' % S_TMP))
    e(salu('s_lshl_b32 s%d, s2, 16' % S_TMP2))
    e(raw('s_waitcnt lgkmcnt(0)'))
    e(salu('s_add_u32 s%d, s6, s%d' % (S_K, S_TMP))); e(salu('s_addc_u32 s%d, s7, 0' % (S_K + 1)))
    e(salu('s_sub_u32 s%d, s%d, 64' % (S_K, S_K))); e(salu('s_subb_u32 s%d, s%d, 0' % (S_K + 1, S_K + 1)))
    e(salu('s_mov_b32 s%d, %d' % (S_K + 2, 524288 + 64))); e(salu('s_mov_b32 s%d, 0x20000' % (S_K + 3)))
    e(salu('s_mov_b32 m0, s%d' % S_WK)); e(salu('s_mov_b32 s%d, 0' % S_SO))
    for n in range(4): e(dma('k', n, S_SO, pol))
    e(salu('s_add_u32 s%d, s4, s%d' % (S_Q, S_TMP2))); e(salu('s_addc_u32 s%d, s5, 0' % (S_Q + 1)))
    e(salu('s_sub_u32 s%d, s%d, 64' % (S_Q, S_Q))); e(salu('s_subb_u32 s%d, s%d, 0' % (S_Q + 1, S_Q + 1)))
    e(salu('s_mov_b32 s%d, %d' % (S_Q + 2, 65536 + 64))); e(salu('s_mov_b32 s%d, 0x20000' % (S_Q + 3)))
    e(salu('s_mul_i32 s%d, s%d, %d' % (S_PREV, S_W, KSLOT)))
    e(salu('s_add_u32 s%d, s%d, %d' % (S_PREV, S_PREV, QREG)))
    e(salu('s_mul_i32 s%d, s%d, 12288' % (S_CUR, S_W)))
    for g in range(4):
        e(salu('s_add_u32 m0, s%d, %d' % (S_PREV, g * 4 * KP)))
        e(salu('s_add_u32 s%d, s%d, %d' % (S_NEXT, S_CUR, g * 4096)))
        for n in range(4): e(dma('q', n, S_NEXT, pol))
    e(salu('s_add_u32 s%d, s44, s%d' % (S_V, S_TMP))); e(salu('s_addc_u32 s%d, s45, 0' % (S_V + 1)))
    e(salu('s_sub_u32 s%d, s%d, %d' % (S_V, S_V, 64 + 16384))); e(salu('s_subb_u32 s%d, s%d, 0' % (S_V + 1, S_V + 1)))
    e(salu('s_mov_b32 s%d, %d' % (S_V + 2, 524288 + 64 + 16384))); e(salu('s_mov_b32 s%d, 0x20000' % (S_V + 3)))
    e(salu('s_add_u32 s%d, s46, s%d' % (S_O, S_TMP2))); e(salu('s_addc_u32 s%d, s47, 0' % (S_O + 1)))
    e(salu('s_mov_b32 s%d, 65536' % (S_O + 2))); e(salu('s_mov_b32 s%d, 0x20000' % (S_O + 3)))
    def group(tk):
        e(salu('s_mov_b32 s%d, %d' % (S_SO, tk * 16384)))
        e(salu('s_add_u32 m0, s%d, %d' % (S_WK, (tk & 3) * SLOT)))
        e(nop(0))
        for n in range(4): e(dma('k', n, S_SO, pol))
        e(salu('s_add_u32 m0, s%d, %d' % (S_WV, ((tk - 1) & 3) * SLOT)))
        e(nop(0))
        for n in range(4): e(dma('v', n, S_SO, pol))
    group(1); group(2)
    for i in range(128): e(valu('v_mov_b32 v%d, 0' % i, [], vr(i)))
    e(valu('v_mov_b32 v%d, 0' % V_L, [], vr(V_L))); e(valu('v_mov_b32 v%d, 0' % (V_L + 1), [], vr(V_L + 1)))
    e(valu('v_add_u32 v%d, s%d, v%d' % (V_KADDR, S_PREV, V_KBASE), vr(V_KBASE), vr(V_KADDR)))
    e(salu('s_mov_b32 s%d, 0x%08x' % (S_C, f32bits(CSCALE))))
    e(salu('s_mov_b32 s%d, 0x%08x' % (S_T, f32bits(THRESH))))
    e(raw('s_waitcnt vmcnt(16)'))
    if opt.stamp: e(raw('s_memtime s[52:53]'))
    for q in range(2):
        for s in range(8):
            e(kread(s, q, False, 128 + 32 * q + 4 * s))
    for q in range(2):
        for s in range(8):
            if s % 4 == 0: e(raw('s_waitcnt lgkmcnt(%d)' % (12 - 4 * (2 * q + s // 4) if not opt.stamp else 0)))
            for j in range(4):
                x = 128 + 32 * q + 4 * s + j
                t0, t1 = V_T + 2 * (j & 1), V_T + 2 * (j & 1) + 1
                e(valu('v_lshlrev_b32 v%d, 16, v%d' % (t0, x), vr(x), vr(t0)))
                e(valu('v_and_b32 v%d, 0xffff0000, v%d' % (t1, x), vr(x), vr(t1)))
                e(valu('v_mul_f32 v%d, s%d, v%d' % (t0, S_C, t0), vr(t0), vr(t0)))
                e(valu('v_mul_f32 v%d, s%d, v%d' % (t1, S_C, t1), vr(t1), vr(t1)))
                e(valu('v_cvt_pk_bf16_f32 v%d, v%d, v%d' % (t0, t0, t1), vr(t0, 2), vr(t0)))
                e(valu('v_accvgpr_write_b32 a%d, v%d' % (AQ(q, s) + j, t0), vr(t0), ar(AQ(q, s) + j)))
    e(valu('v_mov_b32 v%d, v%d' % (V_KADDR, V_KBASE), vr(V_KBASE), vr(V_KADDR)))
    e(raw('s_barrier'))
    group(3)
    for s in range(8): e(kread(s, 0))
    e(raw('s_waitcnt lgkmcnt(0)'))
    P += qk_mfmas(0, first=True)
    for s in range(8): e(kread(s, 1))
    e(nop(7))
    def rowmax(buf, q, dst, tmp):
        a = S(buf, q); o = []
        o.append(valu('v_max3_f32 v%d, v%d, v%d, v%d' % (dst, a, a + 1, a + 2), vr(a, 3), vr(dst)))
        for i in range(6):
            o.append(valu('v_max3_f32 v%d, v%d, v%d, v%d' % (dst, dst, a + 3 + 2 * i, a + 4 + 2 * i), vr(dst) + vr(a + 3 + 2 * i, 2), vr(dst)))
        o.append(valu('v_max_f32 v%d, v%d, v%d' % (dst, dst, a + 15), vr(dst) + vr(a + 15), vr(dst)))
        o.append(valu('v_mov_b32 v%d, v%d' % (tmp, dst), vr(dst), vr(tmp)))
        o.append(nop(1))
        o.append(I('v_permlane32_swap_b32 v%d, v%d' % (dst, tmp), 'perm', vr(dst) + vr(tmp), vr(dst) + vr(tmp)))
        o.append(nop(1))
        o.append(valu('v_max_f32 v%d, v%d, v%d' % (dst, dst, tmp), vr(dst) + vr(tmp), vr(dst)))
        return o
    for q in range(2):
        P += rowmax(0, q, V_T + q, V_T + 2)
        for r in range(16):
            e(valu('v_sub_f32 v%d, v%d, v%d' % (S(0, q) + r, S(0, q) + r, V_T + q), vr(S(0, q) + r) + vr(V_T + q), vr(S(0, q) + r)))
            e(valu('v_sub_f32 v%d, 0, v%d' % (CI(q) + r, V_T + q), vr(V_T + q), vr(CI(q) + r)))
    e(salu('s_mov_b32 s%d, %d' % (S_PREV, 3 * SLOT)))
    e(salu('s_mov_b32 s%d, 0' % S_CUR))
    e(salu('s_mov_b32 s%d, %d' % (S_NEXT, SLOT)))
    e(salu('s_mov_b32 s%d, %d' % (S_SO, 4 * 16384)))
    e(valu('v_mov_b32 v%d, v%d' % (V_VADDR, V_VBASE), vr(V_VBASE), vr(V_VADDR)))

    mf = qk_mfmas(1) + pv_mfmas(0) + qk_mfmas(0) + pv_mfmas(1)
    pre = [[] for _ in range(64)]
    gap = [[] for _ in range(64)]
    pre[0].append(raw('s_waitcnt lgkmcnt(0)'))
    gap[0].append(raw('s_waitcnt vmcnt(16)')); gap[0].append(raw('s_barrier'))
    pre[16].append(raw('s_waitcnt lgkmcnt(0)'))
    pre[32].append(raw('s_cbranch_vccnz L_rare2_0')); pre[32].append(label('L_ret2_0')); pre[32].append(raw('s_waitcnt lgkmcnt(0)'))
    pre[48].append(raw('s_waitcnt lgkmcnt(0)'))
    for ph, half in ((0, 0), (2, 1)):
        rs = [vread(half, sp, b, x) for sp in range(2) for b in range(4) for x in range(2)]
        pos = opt.vpos
        for i, r in enumerate(rs): gap[16 * ph + pos[i]].append(r)
    for ph, kb in ((1, 0), (3, 1)):
        for s in range(8): gap[16 * ph + opt.kpos[s]].append(kread(s, kb))
    gap[1].append(valu('v_add_u32 v%d, s%d, v%d' % (V_KADDR, S_NEXT, V_KBASE), vr(V_KBASE), vr(V_KADDR)))
    if not opt.nodma:
        g0 = opt.vdma[0]
        gap[g0 - 1].append(salu('s_add_u32 m0, s%d, s%d' % (S_PREV, S_WV)))
        for n in range(4): gap[opt.vdma[n]].append(dma('v', n, S_SO, pol))
        g0 = opt.kdma[0]
        gap[g0 - 1].append(salu('s_add_u32 m0, s%d, s%d' % (S_CUR, S_WK)))
        for n in range(4): gap[opt.kdma[n]].append(dma('k', n, S_SO, pol))
    gap[33].append(salu('s_cmp_eq_u32 s%d, %d' % (S_SO, 35 * 16384)))
    gap[33].append(salu('s_cselect_b32 s%d, 0x7f800000, s%d' % (S_T2, S_T)))
    last = max(opt.kdma[3], opt.vdma[3], 57)
    rot = [salu('s_mov_b32 s%d, s%d' % (S_PREV, S_CUR)), salu('s_mov_b32 s%d, s%d' % (S_CUR, S_NEXT)),
           salu('s_add_u32 s%d, s%d, %d' % (S_NEXT, S_NEXT, SLOT)), salu('s_cmp_eq_u32 s%d, %d' % (S_NEXT, 4 * SLOT)),
           salu('s_cselect_b32 s%d, 0, s%d' % (S_NEXT, S_NEXT)),
           valu('v_add_u32 v%d, s%d, v%d' % (V_VADDR, S_CUR, V_VBASE), vr(V_VBASE), vr(V_VADDR)),
           salu('s_add_u32 s%d, s%d, 16384' % (S_SO, S_SO))]
    assert last <= 62
    rp = [last, last, min(last + 1, 62), min(last + 1, 62), min(last + 1, 62), min(last + 2, 62), min(last + 2, 62)]
    post = [[] for _ in range(64)]
    for x, g in zip(rot, rp): post[g].append(x)
    post[63].append(salu('s_cmp_lt_u32 s%d, %d' % (S_SO, 36 * 16384)))
    post[63].append(raw('s_cbranch_vccnz L_rare2_1')); post[63].append(label('L_ret2_1'))
    post[63].append(raw('s_cbranch_scc1 L_loop'))
    if opt.stamp:
        gap[0].append(raw('s_memtime s[%d:%d]' % (S_TS, S_TS + 1)))
        gap[16].append(salu('s_lshr_b32 s%d, s%d, 14' % (S_IT, S_SO)))
        gap[16].append(raw('v_writelane_b32 v%d, s%d, s%d' % (V_STAMP, S_TS, S_IT)))
    val = [[] for _ in range(64)]
    entry_ops = []
    for buf, start, treg, idx in ((1, 16 + opt.start, S_T, 0), (0, 48 + opt.start, S_T2, 1)):
        H = max_tree(buf) + [I('v_cmp_lt_f32 vcc, s%d, v%d' % (treg, V_MX), 'valu', vr(V_MX), ['vcc'])]
        BR = [raw('s_cbranch_vccnz L_rare1_%d' % idx), label('L_ret1_%d' % idx)]
        E = e_stream(buf)
        if opt.novalu: H, BR, E = [], [], []
        fixed = [sum(x.cost for x in pre[(g + 1) % 64]) + sum(x.cost for x in gap[g % 64]) + sum(x.cost for x in post[g % 64]) for g in range(start, start + 32)]
        tot = sum(fixed) + sum(x.cost for x in H + BR + E)
        budget = tot / 32.0
        stream = [('h', x) for x in H] + [('b', BR)] + [('e', x) for x in E]
        k = 0; cum = 0.0
        for gi in range(32):
            g = (start + gi) % 64
            cum += budget - fixed[gi]
            sawcmp = False
            while k < len(stream):
                tag, x = stream[k]
                if tag == 'b':
                    if sawcmp: break
                    val[g] += x; cum -= 4; k += 1; continue
                if cum < x.cost - budget * 0.0 - 2 and gi < 31: break
                val[g].append(x); cum -= x.cost; k += 1
                if tag == 'e' and buf == 0 and start + gi < 64: entry_ops.append(x)
                if tag == 'h' and 'vcc' in x.w: sawcmp = True
        assert k == len(stream)
    B = [label('L_loop')]
    for g in range(64):
        B += pre[g]
        if not (opt.nomfma): B.append(mf[g])
        f = list(gap[g]); v = list(val[g])
        if g == 0:
            B += f[:2]; f = f[2:]
        while f or v:
            if v:
                B.append(v.pop(0))
                while v and v[0].k == 'label': B.append(v.pop(0))
            if f: B.append(f.pop(0))
        B += post[g]
    P += entry_ops
    if opt.stamp: e(raw('s_memtime s[54:55]'))

    X = []
    def x(i): X.append(i)
    if opt.stamp: x(raw('s_memtime s[56:57]'))
    for q in range(2):
        l = V_L + q; t = V_T + q
        x(valu('v_mov_b32 v%d, v%d' % (t, l), vr(l), vr(t)))
    x(nop(1))
    for q in range(2):
        l = V_L + q; t = V_T + q
        x(I('v_permlane32_swap_b32 v%d, v%d' % (l, t), 'perm', vr(l) + vr(t), vr(l) + vr(t)))
    x(nop(1))
    for q in range(2):
        l = V_L + q; t = V_T + q
        x(valu('v_add_f32 v%d, v%d, v%d' % (l, l, t), vr(l) + vr(t), vr(l)))
    for q in range(2):
        l = V_L + q
        x(trans('v_rcp_f32 v%d, v%d' % (l, l), vr(l), vr(l)))
    a = V_T + 2
    x(valu('v_and_b32 v%d, 31, v%d' % (a, V_TID), vr(V_TID), vr(a)))
    x(valu('v_lshlrev_b32 v%d, 8, v%d' % (a, a), vr(a), vr(a)))
    x(valu('v_bfe_u32 v%d, v%d, 5, 1' % (a + 1, V_TID), vr(V_TID), vr(a + 1)))
    x(valu('v_lshl_add_u32 v%d, v%d, 4, v%d' % (a, a + 1, a), vr(a, 2), vr(a)))
    x(salu('s_lshl_b32 s%d, s%d, 14' % (S_TMP, S_W)))
    x(salu('s_add_u32 s%d, s%d, 8192' % (S_TMP2, S_TMP)))
    x(nop(3))
    spol = ' nt' if opt.snt else ''
    for q in range(2):
        for b in range(4):
            o = O(q, b)
            for r in range(16):
                x(valu('v_mul_f32 v%d, v%d, v%d' % (o + r, o + r, V_L + q), vr(o + r) + vr(V_L + q), vr(o + r)))
            for r in range(8):
                x(valu('v_cvt_pk_bf16_f32 v%d, v%d, v%d' % (o + r, o + 2 * r, o + 2 * r + 1), vr(o + 2 * r, 2), vr(o + r)))
            x(nop(1))
            for p in range(2):
                d = o + 4 * p
                x(I('v_permlane32_swap_b32 v%d, v%d' % (d, d + 2), 'perm', vr(d) + vr(d + 2), vr(d) + vr(d + 2)))
                x(I('v_permlane32_swap_b32 v%d, v%d' % (d + 1, d + 3), 'perm', vr(d + 1) + vr(d + 3), vr(d + 1) + vr(d + 3)))
            for p in range(2):
                d = o + 4 * p
                x(I('buffer_store_dwordx4 %s, v%d, s[%d:%d], s%d offen offset:%d%s' % (vs(d, 4), a, S_O, S_O + 3, S_TMP2 if q else S_TMP, 64 * b + 32 * p, spol), 'vmem', vr(d, 4) + vr(a)))
    if opt.stamp:
        x(raw('s_waitcnt vmcnt(0)'))
        x(raw('s_memtime s[58:59]'))
        x(raw('s_memrealtime s[60:61]'))
        x(raw('s_getreg_b32 s62, hwreg(HW_REG_XCC_ID)'))
        x(raw('s_waitcnt lgkmcnt(0)'))
        for i, sr in enumerate((50, 52, 54, 56, 58, 60, 61, 62)):
            x(raw('v_writelane_b32 v%d, s%d, %d' % (V_STAMP, sr, 40 + i)))
        x(salu('s_mov_b32 s%d, s48' % S_WS)); x(salu('s_mov_b32 s%d, s49' % (S_WS + 1)))
        x(salu('s_mov_b32 s%d, %d' % (S_WS + 2, 256 * 1024))); x(salu('s_mov_b32 s%d, 0x20000' % (S_WS + 3)))
        x(salu('s_lshl_b32 s%d, s2, 10' % S_TMP))
        x(valu('v_lshlrev_b32 v%d, 2, v%d' % (a, V_TID), vr(V_TID), vr(a)))
        x(raw('buffer_store_dword v%d, v%d, s[%d:%d], s%d offen' % (V_STAMP, a, S_WS, S_WS + 3, S_TMP)))
    x(label('L_end'))
    x(raw('s_endpgm'))

    R = []
    for idx, buf in ((0, 1), (1, 0)):
        R.append(label('L_rare1_%d' % idx))
        for q in range(2):
            d = V_T + q
            R += rowmax(buf, q, d, V_T + 2)
            R.append(valu('v_max_f32 v%d, 0, v%d' % (d, d), vr(d), vr(d)))
            R.append(trans('v_exp_f32 v%d, -v%d' % (V_F + q, d), vr(d), vr(V_F + q)))
            for r in range(16):
                R.append(valu('v_sub_f32 v%d, v%d, v%d' % (S(buf, q) + r, S(buf, q) + r, d), vr(S(buf, q) + r) + vr(d), vr(S(buf, q) + r)))
                R.append(valu('v_sub_f32 v%d, v%d, v%d' % (CI(q) + r, CI(q) + r, d), vr(CI(q) + r) + vr(d), vr(CI(q) + r)))
            R.append(valu('v_mul_f32 v%d, v%d, v%d' % (V_L + q, V_L + q, V_F + q), vr(V_L + q) + vr(V_F + q), vr(V_L + q)))
        R.append(raw('s_branch L_ret1_%d' % idx))
    for idx in range(2):
        R.append(label('L_rare2_%d' % idx))
        R.append(nop(15))
        for q in range(2):
            for i in range(64):
                R.append(valu('v_mul_f32 v%d, v%d, v%d' % (64 * q + i, 64 * q + i, V_F + q), vr(64 * q + i) + vr(V_F + q), vr(64 * q + i)))
        R.append(nop(1))
        R.append(raw('s_branch L_ret2_%d' % idx))
    return P, B, X, R, (pre, gap, val, post)

def states(i):
    if i.k == 'label': return 0
    if i.k == 'nop': return int(i.t.split()[1]) + 1
    return 1
def check(seq, name):
    errs = 0
    for n, c in enumerate(seq):
        if c.k in ('label', 'nop', 'salu', 'other'): continue
        dist = 0
        for p in reversed(seq[max(0, n - 40):n]):
            need = 0
            if p.k == 'mfma':
                if c.k == 'mfma':
                    if p.w & c.r: need = 12
                    if (p.w & c.c) and p.w != c.c: need = max(need, 10)
                else:
                    if p.w & (c.r | c.w): need = 12
                    if c.k in ('valu', 'trans', 'perm') and (p.c & c.w): need = max(need, 7)
            elif p.k in ('valu', 'trans', 'perm'):
                if c.k == 'mfma' and (p.w & (c.r | c.c)): need = 2
                if c.k == 'perm' and (p.w & c.r): need = 2
                if p.k == 'trans' and c.k in ('valu', 'perm') and (p.w & c.r): need = max(need, 1)
                if p.k == 'trans' and c.k in ('vmem', 'ds') and (p.w & c.r): need = max(need, 1)
            elif p.k == 'vmem' and 'store' in p.t:
                if c.k in ('valu', 'trans', 'perm') and (p.r & c.w): need = 2
            if need > dist:
                print('HAZARD[%s] need %d have %d: %s  ->  %s' % (name, need, dist, p.t, c.t)); errs += 1
            dist += states(p)
    return errs

def main():
    ap = argparse.ArgumentParser()
    ap.add_argument('-o', default='k.s')
    ap.add_argument('--nt', type=int, default=0)
    ap.add_argument('--snt', type=int, default=0)
    ap.add_argument('--stamp', type=int, default=0)
    ap.add_argument('--nodma', type=int, default=0)
    ap.add_argument('--novalu', type=int, default=0)
    ap.add_argument('--nomfma', type=int, default=0)
    ap.add_argument('--start', type=int, default=3)
    ap.add_argument('--vdma', default='18,22,26,30')
    ap.add_argument('--kdma', default='50,54,58,61')
    ap.add_argument('--vpos', default='0,1,2,3,4,5,6,7,8,9,10,11,12,13,13,14')
    ap.add_argument('--kpos', default='0,1,3,5,7,9,11,13')
    ap.add_argument('--show', type=int, default=0)
    opt = ap.parse_args()
    for k in ('vdma', 'kdma', 'vpos', 'kpos'): setattr(opt, k, [int(x) for x in getattr(opt, k).split(',')])
    P, B, X, R, dbg = build(opt)
    errs = check(P + B + B + X, 'main') + check(R, 'rare')
    if opt.show:
        pre, gap, val, post = dbg
        for g in range(64):
            c = sum(i.cost for i in pre[(g + 1) % 64] + gap[g] + val[g] + post[g])
            print(g, c, len([i for i in pre[(g + 1) % 64] + gap[g] + val[g] + post[g] if i.k != 'label']), ' '.join(i.t.split()[0].replace('v_', '').replace('_f32', '') for i in gap[g] + val[g] + post[g] + pre[(g + 1) % 64] if i.k != 'label'))
    hdr = open('standalone__gqa_softmax__near_ridge.s.ref').read().split('\n')
    out = []
    for l in hdr:
        if l.startswith('; @launch'): break
        out.append(l)
    out.append('; @launch grid=(256,1,1) block=(256,1,1) lds=%d' % LDS_BYTES)
    out.append('.amdgcn_target "amdgcn-amd-amdhsa--gfx950"')
    out.append('.text')
    N = 'standalone__gqa_softmax__near_ridge_kernel'
    out += ['.globl ' + N, '.p2align 8', '.type %s,@function' % N, N + ':']
    for i in P: out.append(('' if i.k == 'label' else '    ') + i.t)
    out.append('.p2align 6')
    for i in B + X + R: out.append(('' if i.k == 'label' else '    ') + i.t)
    out += ['.section .rodata,"a"', '.p2align 6', '.amdhsa_kernel ' + N,
            '  .amdhsa_next_free_vgpr %d' % (256 + NA), '  .amdhsa_next_free_sgpr 72', '  .amdhsa_accum_offset 256',
            '  .amdhsa_group_segment_fixed_size 0', '  .amdhsa_kernarg_size 48', '  .amdhsa_user_sgpr_count 2',
            '  .amdhsa_user_sgpr_kernarg_segment_ptr 1', '  .amdhsa_system_sgpr_workgroup_id_x 1', '.end_amdhsa_kernel']
    open(opt.o, 'w').write('\n'.join(out) + '\n')
    print('wrote', opt.o, 'instrs: pro %d loop %d epi %d rare %d  hazards %d' % (len(P), len(B), len(X), len(R), errs))
main()
```

```python
import sys, argparse, struct

def f32bits(x): return struct.unpack('<I', struct.pack('<f', x))[0]

class I:
    __slots__ = ('t', 'k', 'r', 'w', 'cost', 'c')
    def __init__(s, t, k, r=(), w=(), cost=4, c=()):
        s.t = t; s.k = k; s.r = set(r); s.w = set(w); s.cost = cost; s.c = set(c)

def vr(b, n=1): return ['v%d' % i for i in range(b, b + n)]
def ar(b, n=1): return ['a%d' % i for i in range(b, b + n)]
def vs(b, n): return 'v[%d:%d]' % (b, b + n - 1) if n > 1 else 'v%d' % b
def as_(b, n): return 'a[%d:%d]' % (b, b + n - 1) if n > 1 else 'a%d' % b

def O(q, b): return 64 * q + 16 * b
def S(buf, q): return 128 + 32 * buf + 16 * q
def CI(q): return 192 + 16 * q
V_KADDR, V_VADDR, V_KBASE, V_VBASE = 224, 225, 226, 227
V_DMA = 228
V_L = 232
V_LS = 234
V_MX = 236
V_F = 238
V_T = 240
V_TID = 248
V_STAMP = 249
def AQ(q, s): return 32 * q + 4 * s
def AK(s): return 64 + 4 * s
def AV(sp, b): return 96 + 4 * (4 * sp + b)
NA = 128
S_K, S_V, S_Q, S_O = 8, 12, 16, 20
S_PREV, S_CUR, S_NEXT, S_WK, S_WV, S_SO, S_T, S_T2, S_W, S_TMP, S_TMP2, S_C = 24, 25, 26, 27, 28, 29, 30, 31, 32, 33, 34, 35
S_TS = 36
S_WS = 40
S_IT = 44
KP = 1040
KSLOT = 16 * KP
SLOT = KSLOT + 16384
QREG = 2 * SLOT + KSLOT
LDS_BYTES = QREG + 4 * KSLOT
THRESH = 8.0
CSCALE = 1.4426950408889634 / (128 ** 0.5)

def mfma(d, a, b, c, a_acc=True, b_acc=False):
    A = as_(a, 4) if a_acc else vs(a, 4)
    B = as_(b, 4) if b_acc else vs(b, 4)
    rd = (ar(a, 4) if a_acc else vr(a, 4)) + (ar(b, 4) if b_acc else vr(b, 4))
    if c is None:
        return I('v_mfma_f32_32x32x16_bf16 %s, %s, %s, 0' % (vs(d, 16), A, B), 'mfma', rd, vr(d, 16), 8)
    return I('v_mfma_f32_32x32x16_bf16 %s, %s, %s, %s' % (vs(d, 16), A, B, vs(c, 16)), 'mfma', rd, vr(d, 16), 8, vr(c, 16))
def valu(t, r, w): return I(t, 'valu', r, w, 4)
def trans(t, r, w): return I(t, 'trans', r, w, 8)
def salu(t): return I(t, 'salu', (), (), 4)
def raw(t, cost=4): return I(t, 'other', (), (), cost)
def label(n): return I(n + ':', 'label', (), (), 0)
def nop(n): return I('s_nop %d' % n, 'nop', (), (), 4 * (n + 1))

def kread(s, kb, dst_acc=True, dst=None, addr=V_KADDR):
    off = kb * 8 * KP + (s >> 1) * 256 + (s & 1) * 32
    if dst is None: dst = AK(s)
    D = as_(dst, 4) if dst_acc else vs(dst, 4)
    return I('ds_read_b128 %s, v%d offset:%d' % (D, addr, off), 'ds', vr(addr), ar(dst, 4) if dst_acc else vr(dst, 4))
def vread(half, sp, b, x):
    s2 = 2 * half + sp
    off = (4 * s2 + 2 * x) * 1024 + b * 256
    dst = AV(sp, b) + 2 * x
    return I('ds_read_b64_tr_b16 %s, v%d offset:%d' % (as_(dst, 2), V_VADDR, off), 'ds', vr(V_VADDR), ar(dst, 2))
def dma(kind, n, so, pol):
    if kind == 'k':
        return I('buffer_load_dwordx4 v%d, s[%d:%d], s%d offen offset:%d %slds' % (V_DMA + n, S_K, S_K + 3, so, n * KP, pol), 'vmem', vr(V_DMA + n))
    if kind == 'q':
        return I('buffer_load_dwordx4 v%d, s[%d:%d], s%d offen offset:%d %slds' % (V_DMA + n, S_Q, S_Q + 3, so, n * KP, pol), 'vmem', vr(V_DMA + n))
    return I('buffer_load_dwordx4 v%d, s[%d:%d], s%d offen offset:%d %slds' % (V_DMA, S_V, S_V + 3, so, n * 1024, pol), 'vmem', vr(V_DMA))

def qk_mfmas(buf, first=False):
    out = []
    for s in range(8):
        for q in range(2):
            c = S(buf, q) if s else (None if first else CI(q))
            out.append(mfma(S(buf, q), AK(s), AQ(q, s), c, True, True))
    return out
def pv_mfmas(buf):
    out = []
    for sp in range(2):
        for b in range(4):
            for q in range(2):
                out.append(mfma(O(q, b), AV(sp, b), S(buf, q) + 8 * sp, O(q, b), True, False))
    return out

def max_tree(buf):
    out = []
    a, b = S(buf, 0), S(buf, 1)
    m0, m1 = V_MX, V_MX + 1
    def m3(d, x, y, z): return valu('v_max3_f32 v%d, v%d, v%d, v%d' % (d, x, y, z), vr(x) + vr(y) + vr(z), vr(d))
    out.append(m3(m0, a, a + 1, a + 2)); out.append(m3(m1, b, b + 1, b + 2))
    for i in range(6):
        out.append(m3(m0, m0, a + 3 + 2 * i, a + 4 + 2 * i)); out.append(m3(m1, m1, b + 3 + 2 * i, b + 4 + 2 * i))
    out.append(m3(m0, m0, a + 15, b + 15))
    out.append(valu('v_max_f32 v%d, v%d, v%d' % (m0, m0, m1), vr(m0) + vr(m1), vr(m0)))
    return out

def e_stream(buf):
    ops = []
    seq = []
    for sp in range(2):
        for q in range(2):
            for j in range(8):
                seq.append((q, sp, j))
    def ex(q, sp, j):
        r = S(buf, q) + 8 * sp + j
        return trans('v_exp_f32 v%d, v%d' % (r, r), vr(r), vr(r))
    def post(q, sp, j):
        r = S(buf, q) + 8 * sp + j
        o = []
        ls = V_LS + q
        if sp == 0 and j == 0:
            pass
        elif sp == 0 and j == 1:
            o.append(valu('v_add_f32 v%d, v%d, v%d' % (ls, r - 1, r), vr(r - 1) + vr(r), vr(ls)))
        else:
            o.append(valu('v_add_f32 v%d, v%d, v%d' % (ls, ls, r), vr(ls) + vr(r), vr(ls)))
        if j & 1:
            d = S(buf, q) + 8 * sp + (j >> 1)
            o.append(valu('v_cvt_pk_bf16_f32 v%d, v%d, v%d' % (d, r - 1, r), vr(r - 1) + vr(r), vr(d)))
        if sp == 1 and j == 7:
            o.append(valu('v_add_f32 v%d, v%d, v%d' % (V_L + q, V_L + q, ls), vr(V_L + q) + vr(ls), vr(V_L + q)))
        return o
    LAG = 1
    for i in range(len(seq) + LAG):
        if i < len(seq): ops.append(ex(*seq[i]))
        if i >= LAG: ops += post(*seq[i - LAG])
    return ops

def build(opt):
    pol = 'nt ' if opt.nt else ''
    P = []
    def e(x): P.append(x)
    e(raw('s_cmp_ge_u32 s2, 256')); e(raw('s_cbranch_scc1 L_end'))
    e(raw('s_load_dwordx4 s[4:7], s[0:1], 0'))
    e(raw('s_load_dwordx4 s[44:47], s[0:1], 16'))
    if opt.stamp: e(raw('s_load_dwordx2 s[48:49], s[0:1], 40'))
    if opt.stamp: e(raw('s_memtime s[50:51]'))
    e(valu('v_mov_b32 v%d, v0' % V_TID, ['v0'], vr(V_TID)))
    e(valu('v_lshrrev_b32 v1, 6, v0', ['v0'], ['v1']))
    e(valu('v_and_b32 v2, 63, v0', ['v0'], ['v2']))
    e(raw('v_readfirstlane_b32 s%d, v1' % S_W))
    if opt.stamp: e(raw('v_mov_b32 v250, v2'))
    if opt.stamp: e(raw('s_memrealtime s[66:67]'))
    e(valu('v_bfe_u32 v3, v2, 2, 2', ['v2'], ['v3']))
    e(valu('v_lshlrev_b32 v3, 8, v3', ['v3'], ['v3']))
    e(valu('v_lshrrev_b32 v4, 4, v2', ['v2'], ['v4']))
    e(valu('v_lshl_add_u32 v3, v4, 6, v3', ['v3', 'v4'], ['v3']))
    e(valu('v_and_b32 v4, 3, v2', ['v2'], ['v4']))
    e(valu('v_lshl_add_u32 v3, v4, 4, v3', ['v3', 'v4'], ['v3']))
    e(valu('v_lshl_add_u32 v3, v1, 12, v3', ['v3', 'v1'], ['v3']))
    for n in range(4):
        e(valu('v_add_u32 v%d, %d, v3' % (V_DMA + n, 64 - 16 * n), ['v3'], vr(V_DMA + n)))
    e(valu('v_bfe_u32 v3, v2, 2, 3', ['v2'], ['v3']))
    e(valu('v_mul_u32_u24 v3, %d, v3' % KP, ['v3'], ['v3']))
    e(valu('v_lshl_add_u32 v3, v4, 6, v3', ['v3', 'v4'], ['v3']))
    e(valu('v_lshrrev_b32 v5, 5, v2', ['v2'], ['v5']))
    e(valu('v_lshl_add_u32 v%d, v5, 4, v3' % V_KBASE, ['v3', 'v5'], vr(V_KBASE)))
    e(valu('v_bfe_u32 v3, v2, 2, 2', ['v2'], ['v3']))
    e(valu('v_lshlrev_b32 v3, 6, v3', ['v3'], ['v3']))
    e(valu('v_lshl_add_u32 v3, v5, 10, v3', ['v3', 'v5'], ['v3']))
    e(valu('v_bfe_u32 v6, v2, 4, 1', ['v2'], ['v6']))
    e(valu('v_lshl_add_u32 v3, v6, 5, v3', ['v3', 'v6'], ['v3']))
    e(valu('v_lshl_add_u32 v3, v4, 3, v3', ['v3', 'v4'], ['v3']))
    e(valu('v_add_u32 v%d, %d, v3' % (V_VBASE, KSLOT), ['v3'], vr(V_VBASE)))
    e(salu('s_mul_i32 s%d, s%d, %d' % (S_WK, S_W, 4 * KP)))
    e(salu('s_lshl_b32 s%d, s%d, 12' % (S_WV, S_W)))
    e(salu('s_add_u32 s%d, s%d, %d' % (S_WV, S_WV, KSLOT)))
    e(salu('s_lshl_b32 s%d, s2, 19' % S_TMP))
    e(salu('s_lshl_b32 s%d, s2, 16' % S_TMP2))
    e(raw('s_waitcnt lgkmcnt(0)'))
    e(salu('s_add_u32 s%d, s6, s%d' % (S_K, S_TMP))); e(salu('s_addc_u32 s%d, s7, 0' % (S_K + 1)))
    e(salu('s_sub_u32 s%d, s%d, 64' % (S_K, S_K))); e(salu('s_subb_u32 s%d, s%d, 0' % (S_K + 1, S_K + 1)))
    e(salu('s_mov_b32 s%d, %d' % (S_K + 2, 524288 + 64))); e(salu('s_mov_b32 s%d, 0x20000' % (S_K + 3)))
    e(salu('s_mov_b32 m0, s%d' % S_WK)); e(salu('s_mov_b32 s%d, 0' % S_SO))
    for n in range(4): e(dma('k', n, S_SO, pol))
    e(salu('s_add_u32 s%d, s4, s%d' % (S_Q, S_TMP2))); e(salu('s_addc_u32 s%d, s5, 0' % (S_Q + 1)))
    e(salu('s_sub_u32 s%d, s%d, 64' % (S_Q, S_Q))); e(salu('s_subb_u32 s%d, s%d, 0' % (S_Q + 1, S_Q + 1)))
    e(salu('s_mov_b32 s%d, %d' % (S_Q + 2, 65536 + 64))); e(salu('s_mov_b32 s%d, 0x20000' % (S_Q + 3)))
    e(salu('s_mul_i32 s%d, s%d, %d' % (S_PREV, S_W, KSLOT)))
    e(salu('s_add_u32 s%d, s%d, %d' % (S_PREV, S_PREV, QREG)))
    e(salu('s_mul_i32 s%d, s%d, 12288' % (S_CUR, S_W)))
    for g in range(4):
        e(salu('s_add_u32 m0, s%d, %d' % (S_PREV, g * 4 * KP)))
        e(salu('s_add_u32 s%d, s%d, %d' % (S_NEXT, S_CUR, g * 4096)))
        for n in range(4): e(dma('q', n, S_NEXT, pol))
    e(salu('s_add_u32 s%d, s44, s%d' % (S_V, S_TMP))); e(salu('s_addc_u32 s%d, s45, 0' % (S_V + 1)))
    e(salu('s_sub_u32 s%d, s%d, %d' % (S_V, S_V, 64 + 16384))); e(salu('s_subb_u32 s%d, s%d, 0' % (S_V + 1, S_V + 1)))
    e(salu('s_mov_b32 s%d, %d' % (S_V + 2, 524288 + 64 + 16384))); e(salu('s_mov_b32 s%d, 0x20000' % (S_V + 3)))
    e(salu('s_add_u32 s%d, s46, s%d' % (S_O, S_TMP2))); e(salu('s_addc_u32 s%d, s47, 0' % (S_O + 1)))
    e(salu('s_mov_b32 s%d, 65536' % (S_O + 2))); e(salu('s_mov_b32 s%d, 0x20000' % (S_O + 3)))
    def group(tk):
        e(salu('s_mov_b32 s%d, %d' % (S_SO, tk * 16384)))
        e(salu('s_add_u32 m0, s%d, %d' % (S_WK, (tk & 3) * SLOT)))
        e(nop(0))
        for n in range(4): e(dma('k', n, S_SO, pol))
        e(salu('s_add_u32 m0, s%d, %d' % (S_WV, ((tk - 1) & 3) * SLOT)))
        e(nop(0))
        for n in range(4): e(dma('v', n, S_SO, pol))
    group(1); group(2)
    for i in range(128): e(valu('v_mov_b32 v%d, 0' % i, [], vr(i)))
    e(valu('v_mov_b32 v%d, 0' % V_L, [], vr(V_L))); e(valu('v_mov_b32 v%d, 0' % (V_L + 1), [], vr(V_L + 1)))
    e(valu('v_add_u32 v%d, s%d, v%d' % (V_KADDR, S_PREV, V_KBASE), vr(V_KBASE), vr(V_KADDR)))
    e(salu('s_mov_b32 s%d, 0x%08x' % (S_C, f32bits(CSCALE))))
    e(salu('s_mov_b32 s%d, 0x%08x' % (S_T, f32bits(THRESH))))
    e(raw('s_waitcnt vmcnt(16)'))
    if opt.stamp: e(raw('s_memtime s[52:53]'))
    for q in range(2):
        for s in range(8):
            e(kread(s, q, False, 128 + 32 * q + 4 * s))
    for q in range(2):
        for s in range(8):
            if s % 4 == 0: e(raw('s_waitcnt lgkmcnt(%d)' % (12 - 4 * (2 * q + s // 4) if not opt.stamp else 0)))
            for j in range(4):
                x = 128 + 32 * q + 4 * s + j
                t0, t1 = V_T + 2 * (j & 1), V_T + 2 * (j & 1) + 1
                e(valu('v_lshlrev_b32 v%d, 16, v%d' % (t0, x), vr(x), vr(t0)))
                e(valu('v_and_b32 v%d, 0xffff0000, v%d' % (t1, x), vr(x), vr(t1)))
                e(valu('v_mul_f32 v%d, s%d, v%d' % (t0, S_C, t0), vr(t0), vr(t0)))
                e(valu('v_mul_f32 v%d, s%d, v%d' % (t1, S_C, t1), vr(t1), vr(t1)))
                e(valu('v_cvt_pk_bf16_f32 v%d, v%d, v%d' % (t0, t0, t1), vr(t0, 2), vr(t0)))
                e(valu('v_accvgpr_write_b32 a%d, v%d' % (AQ(q, s) + j, t0), vr(t0), ar(AQ(q, s) + j)))
    e(valu('v_mov_b32 v%d, v%d' % (V_KADDR, V_KBASE), vr(V_KBASE), vr(V_KADDR)))
    e(raw('s_barrier'))
    group(3)
    for s in range(8): e(kread(s, 0))
    e(raw('s_waitcnt lgkmcnt(0)'))
    P += qk_mfmas(0, first=True)
    for s in range(8): e(kread(s, 1))
    e(nop(7))
    def rowmax(buf, q, dst, tmp):
        a = S(buf, q); o = []
        o.append(valu('v_max3_f32 v%d, v%d, v%d, v%d' % (dst, a, a + 1, a + 2), vr(a, 3), vr(dst)))
        for i in range(6):
            o.append(valu('v_max3_f32 v%d, v%d, v%d, v%d' % (dst, dst, a + 3 + 2 * i, a + 4 + 2 * i), vr(dst) + vr(a + 3 + 2 * i, 2), vr(dst)))
        o.append(valu('v_max_f32 v%d, v%d, v%d' % (dst, dst, a + 15), vr(dst) + vr(a + 15), vr(dst)))
        o.append(valu('v_mov_b32 v%d, v%d' % (tmp, dst), vr(dst), vr(tmp)))
        o.append(nop(1))
        o.append(I('v_permlane32_swap_b32 v%d, v%d' % (dst, tmp), 'perm', vr(dst) + vr(tmp), vr(dst) + vr(tmp)))
        o.append(nop(1))
        o.append(valu('v_max_f32 v%d, v%d, v%d' % (dst, dst, tmp), vr(dst) + vr(tmp), vr(dst)))
        return o
    for q in range(2):
        P += rowmax(0, q, V_T + q, V_T + 2)
        for r in range(16):
            e(valu('v_sub_f32 v%d, v%d, v%d' % (S(0, q) + r, S(0, q) + r, V_T + q), vr(S(0, q) + r) + vr(V_T + q), vr(S(0, q) + r)))
            e(valu('v_sub_f32 v%d, 0, v%d' % (CI(q) + r, V_T + q), vr(V_T + q), vr(CI(q) + r)))
    e(salu('s_mov_b32 s%d, %d' % (S_PREV, 3 * SLOT)))
    e(salu('s_mov_b32 s%d, 0' % S_CUR))
    e(salu('s_mov_b64 vcc, 0'))
    e(salu('s_mov_b32 s%d, %d' % (S_NEXT, SLOT)))
    e(salu('s_mov_b32 s%d, %d' % (S_SO, 4 * 16384)))
    e(valu('v_mov_b32 v%d, v%d' % (V_VADDR, V_VBASE), vr(V_VBASE), vr(V_VADDR)))

    mf = qk_mfmas(1) + pv_mfmas(0) + qk_mfmas(0) + pv_mfmas(1)
    pre = [[] for _ in range(64)]
    gap = [[] for _ in range(64)]
    pre[0].append(raw('s_waitcnt lgkmcnt(0)'))
    gap[0].append(raw('s_waitcnt vmcnt(16)')); gap[0].append(raw('s_barrier'))
    pre[16].append(raw('s_waitcnt lgkmcnt(0)'))
    pre[32].append(raw('s_cbranch_vccnz L_rare2_0')); pre[32].append(label('L_ret2_0')); pre[32].append(raw('s_waitcnt lgkmcnt(0)'))
    pre[48].append(raw('s_waitcnt lgkmcnt(0)'))
    for ph, half in ((0, 0), (2, 1)):
        rs = [vread(half, sp, b, x) for sp in range(2) for b in range(4) for x in range(2)]
        pos = opt.vpos
        for i, r in enumerate(rs): gap[16 * ph + pos[i]].append(r)
    for ph, kb in ((1, 0), (3, 1)):
        for s in range(8): gap[16 * ph + opt.kpos[s]].append(kread(s, kb))
    gap[1].append(valu('v_add_u32 v%d, s%d, v%d' % (V_KADDR, S_NEXT, V_KBASE), vr(V_KBASE), vr(V_KADDR)))
    if not opt.nodma:
        g0 = opt.vdma[0]
        gap[g0 - 1].append(salu('s_add_u32 m0, s%d, s%d' % (S_PREV, S_WV)))
        for n in range(4): gap[opt.vdma[n]].append(dma('v', n, S_SO, pol))
        g0 = opt.kdma[0]
        gap[g0 - 1].append(salu('s_add_u32 m0, s%d, s%d' % (S_CUR, S_WK)))
        for n in range(4): gap[opt.kdma[n]].append(dma('k', n, S_SO, pol))
    gap[33].append(salu('s_cmp_eq_u32 s%d, %d' % (S_SO, 35 * 16384)))
    gap[33].append(salu('s_cselect_b32 s%d, 0x7f800000, s%d' % (S_T2, S_T)))
    last = max(opt.kdma[3], opt.vdma[3], 57)
    rot = [salu('s_mov_b32 s%d, s%d' % (S_PREV, S_CUR)), salu('s_mov_b32 s%d, s%d' % (S_CUR, S_NEXT)),
           salu('s_add_u32 s%d, s%d, %d' % (S_NEXT, S_NEXT, SLOT)), salu('s_cmp_eq_u32 s%d, %d' % (S_NEXT, 4 * SLOT)),
           salu('s_cselect_b32 s%d, 0, s%d' % (S_NEXT, S_NEXT)),
           valu('v_add_u32 v%d, s%d, v%d' % (V_VADDR, S_CUR, V_VBASE), vr(V_VBASE), vr(V_VADDR)),
           salu('s_add_u32 s%d, s%d, 16384' % (S_SO, S_SO))]
    assert last <= 62
    rp = [last, last, min(last + 1, 62), min(last + 1, 62), min(last + 1, 62), min(last + 2, 62), min(last + 2, 62)]
    post = [[] for _ in range(64)]
    for x, g in zip(rot, rp): post[g].append(x)
    post[63].append(salu('s_cmp_lt_u32 s%d, %d' % (S_SO, 36 * 16384)))
    post[63].append(raw('s_cbranch_vccnz L_rare2_1')); post[63].append(label('L_ret2_1'))
    post[63].append(raw('s_cbranch_scc1 L_loop'))
    if opt.stamp:
        gap[0].append(raw('s_memtime s[%d:%d]' % (S_TS, S_TS + 1)))
        gap[16].append(salu('s_lshr_b32 s%d, s%d, 14' % (S_IT, S_SO)))
        gap[17].append(raw('v_cmp_eq_u32 s[64:65], s%d, v250' % S_IT))
        gap[18].append(raw('v_mov_b32 v251, s%d' % S_TS))
        gap[19].append(raw('v_cndmask_b32 v%d, v%d, v251, s[64:65]' % (V_STAMP, V_STAMP)))
    val = [[] for _ in range(64)]
    entry_ops = []
    for buf, start, treg, idx in ((1, 16 + opt.start, S_T, 0), (0, 48 + opt.start, S_T2, 1)):
        H = max_tree(buf) + [I('v_cmp_lt_f32 vcc, s%d, v%d' % (treg, V_MX), 'valu', vr(V_MX), ['vcc'])]
        BR = [raw('s_cbranch_vccnz L_rare1_%d' % idx), label('L_ret1_%d' % idx)]
        E = e_stream(buf)
        if opt.novalu: H, BR, E = [], [nop(0), BR[1]], []
        fixed = [sum(x.cost for x in pre[(g + 1) % 64]) + sum(x.cost for x in gap[g % 64]) + sum(x.cost for x in post[g % 64]) for g in range(start, start + 32)]
        tot = sum(fixed) + sum(x.cost for x in H + BR + E)
        budget = tot / 32.0
        stream = [('h', x) for x in H] + [('b', BR)] + [('e', x) for x in E]
        k = 0; cum = 0.0
        for gi in range(32):
            g = (start + gi) % 64
            cum += budget - fixed[gi]
            sawcmp = False
            while k < len(stream):
                tag, x = stream[k]
                if tag == 'b':
                    if sawcmp: break
                    val[g] += x; cum -= 4; k += 1; continue
                if cum < x.cost - budget * 0.0 - 2 and gi < 31: break
                val[g].append(x); cum -= x.cost; k += 1
                if tag == 'e' and buf == 0 and start + gi < 64: entry_ops.append(x)
                if tag == 'h' and 'vcc' in x.w: sawcmp = True
        assert k == len(stream)
    B = [label('L_loop')]
    for g in range(64):
        B += pre[g]
        if not (opt.nomfma): B.append(mf[g])
        f = list(gap[g]); v = list(val[g])
        if g == 0:
            B += f[:2]; f = f[2:]
        while f or v:
            if v:
                B.append(v.pop(0))
                while v and v[0].k == 'label': B.append(v.pop(0))
            if f: B.append(f.pop(0))
        B += post[g]
    P += entry_ops
    if opt.stamp: e(raw('s_memtime s[54:55]'))

    X = []
    def x(i): X.append(i)
    if opt.stamp: x(raw('s_memtime s[56:57]'))
    for q in range(2):
        l = V_L + q; t = V_T + q
        x(valu('v_mov_b32 v%d, v%d' % (t, l), vr(l), vr(t)))
    x(nop(1))
    for q in range(2):
        l = V_L + q; t = V_T + q
        x(I('v_permlane32_swap_b32 v%d, v%d' % (l, t), 'perm', vr(l) + vr(t), vr(l) + vr(t)))
    x(nop(1))
    for q in range(2):
        l = V_L + q; t = V_T + q
        x(valu('v_add_f32 v%d, v%d, v%d' % (l, l, t), vr(l) + vr(t), vr(l)))
    for q in range(2):
        l = V_L + q
        x(trans('v_rcp_f32 v%d, v%d' % (l, l), vr(l), vr(l)))
    a = V_T + 2
    x(valu('v_and_b32 v%d, 31, v%d' % (a, V_TID), vr(V_TID), vr(a)))
    x(valu('v_lshlrev_b32 v%d, 8, v%d' % (a, a), vr(a), vr(a)))
    x(valu('v_bfe_u32 v%d, v%d, 5, 1' % (a + 1, V_TID), vr(V_TID), vr(a + 1)))
    x(valu('v_lshl_add_u32 v%d, v%d, 4, v%d' % (a, a + 1, a), vr(a, 2), vr(a)))
    x(salu('s_lshl_b32 s%d, s%d, 14' % (S_TMP, S_W)))
    x(salu('s_add_u32 s%d, s%d, 8192' % (S_TMP2, S_TMP)))
    x(nop(3))
    spol = ' nt' if opt.snt else ''
    for q in range(2):
        for b in range(4):
            o = O(q, b)
            for r in range(16):
                x(valu('v_mul_f32 v%d, v%d, v%d' % (o + r, o + r, V_L + q), vr(o + r) + vr(V_L + q), vr(o + r)))
            for r in range(8):
                x(valu('v_cvt_pk_bf16_f32 v%d, v%d, v%d' % (o + r, o + 2 * r, o + 2 * r + 1), vr(o + 2 * r, 2), vr(o + r)))
            x(nop(1))
            for p in range(2):
                d = o + 4 * p
                x(I('v_permlane32_swap_b32 v%d, v%d' % (d, d + 2), 'perm', vr(d) + vr(d + 2), vr(d) + vr(d + 2)))
                x(I('v_permlane32_swap_b32 v%d, v%d' % (d + 1, d + 3), 'perm', vr(d + 1) + vr(d + 3), vr(d + 1) + vr(d + 3)))
            for p in range(2):
                d = o + 4 * p
                x(I('buffer_store_dwordx4 %s, v%d, s[%d:%d], s%d offen offset:%d%s' % (vs(d, 4), a, S_O, S_O + 3, S_TMP2 if q else S_TMP, 64 * b + 32 * p, spol), 'vmem', vr(d, 4) + vr(a)))
    if opt.stamp:
        x(raw('s_waitcnt vmcnt(0)'))
        x(raw('s_memtime s[58:59]'))
        x(raw('s_memrealtime s[60:61]'))
        x(raw('s_getreg_b32 s62, hwreg(HW_REG_XCC_ID)'))
        x(raw('s_waitcnt lgkmcnt(0)'))
        for i, sr in enumerate((50, 52, 54, 56, 58, 60, 61, 62, 66, 67)):
            x(raw('v_writelane_b32 v%d, s%d, %d' % (V_STAMP, sr, 40 + i)))
        x(salu('s_mov_b32 s%d, s48' % S_WS)); x(salu('s_mov_b32 s%d, s49' % (S_WS + 1)))
        x(salu('s_mov_b32 s%d, %d' % (S_WS + 2, 256 * 1024))); x(salu('s_mov_b32 s%d, 0x20000' % (S_WS + 3)))
        x(salu('s_lshl_b32 s%d, s2, 10' % S_TMP))
        x(valu('v_lshlrev_b32 v%d, 2, v%d' % (a, V_TID), vr(V_TID), vr(a)))
        x(raw('buffer_store_dword v%d, v%d, s[%d:%d], s%d offen' % (V_STAMP, a, S_WS, S_WS + 3, S_TMP)))
    x(label('L_end'))
    x(raw('s_endpgm'))

    R = []
    for idx, buf in ((0, 1), (1, 0)):
        R.append(label('L_rare1_%d' % idx))
        for q in range(2):
            d = V_T + q
            R += rowmax(buf, q, d, V_T + 2)
            R.append(valu('v_max_f32 v%d, 0, v%d' % (d, d), vr(d), vr(d)))
            R.append(trans('v_exp_f32 v%d, -v%d' % (V_F + q, d), vr(d), vr(V_F + q)))
            for r in range(16):
                R.append(valu('v_sub_f32 v%d, v%d, v%d' % (S(buf, q) + r, S(buf, q) + r, d), vr(S(buf, q) + r) + vr(d), vr(S(buf, q) + r)))
                R.append(valu('v_sub_f32 v%d, v%d, v%d' % (CI(q) + r, CI(q) + r, d), vr(CI(q) + r) + vr(d), vr(CI(q) + r)))
            R.append(valu('v_mul_f32 v%d, v%d, v%d' % (V_L + q, V_L + q, V_F + q), vr(V_L + q) + vr(V_F + q), vr(V_L + q)))
        R.append(raw('s_branch L_ret1_%d' % idx))
    for idx in range(2):
        R.append(label('L_rare2_%d' % idx))
        R.append(nop(15))
        for q in range(2):
            for i in range(64):
                R.append(valu('v_mul_f32 v%d, v%d, v%d' % (64 * q + i, 64 * q + i, V_F + q), vr(64 * q + i) + vr(V_F + q), vr(64 * q + i)))
        R.append(nop(1))
        R.append(raw('s_branch L_ret2_%d' % idx))
    return P, B, X, R, (pre, gap, val, post)

def states(i):
    if i.k == 'label': return 0
    if i.k == 'nop': return int(i.t.split()[1]) + 1
    return 1
def check(seq, name):
    errs = 0
    for n, c in enumerate(seq):
        if c.k in ('label', 'nop', 'salu', 'other'): continue
        dist = 0
        for p in reversed(seq[max(0, n - 40):n]):
            need = 0
            if p.k == 'mfma':
                if c.k == 'mfma':
                    if p.w & c.r: need = 12
                    if (p.w & c.c) and p.w != c.c: need = max(need, 10)
                else:
                    if p.w & (c.r | c.w): need = 12
                    if c.k in ('valu', 'trans', 'perm') and (p.c & c.w): need = max(need, 7)
            elif p.k in ('valu', 'trans', 'perm'):
                if c.k == 'mfma' and (p.w & (c.r | c.c)): need = 2
                if c.k == 'perm' and (p.w & c.r): need = 2
                if p.k == 'trans' and c.k in ('valu', 'perm') and (p.w & c.r): need = max(need, 1)
                if p.k == 'trans' and c.k in ('vmem', 'ds') and (p.w & c.r): need = max(need, 1)
            elif p.k == 'vmem' and 'store' in p.t:
                if c.k in ('valu', 'trans', 'perm') and (p.r & c.w): need = 2
            if need > dist:
                print('HAZARD[%s] need %d have %d: %s  ->  %s' % (name, need, dist, p.t, c.t)); errs += 1
            dist += states(p)
    return errs

def main():
    ap = argparse.ArgumentParser()
    ap.add_argument('-o', default='k.s')
    ap.add_argument('--nt', type=int, default=0)
    ap.add_argument('--snt', type=int, default=0)
    ap.add_argument('--stamp', type=int, default=0)
    ap.add_argument('--nodma', type=int, default=0)
    ap.add_argument('--novalu', type=int, default=0)
    ap.add_argument('--nomfma', type=int, default=0)
    ap.add_argument('--start', type=int, default=3)
    ap.add_argument('--vdma', default='18,22,26,30')
    ap.add_argument('--kdma', default='50,54,58,61')
    ap.add_argument('--vpos', default='0,1,2,3,4,5,6,7,8,9,10,11,12,13,13,14')
    ap.add_argument('--kpos', default='0,1,3,5,7,9,11,13')
    ap.add_argument('--show', type=int, default=0)
    opt = ap.parse_args()
    for k in ('vdma', 'kdma', 'vpos', 'kpos'): setattr(opt, k, [int(x) for x in getattr(opt, k).split(',')])
    P, B, X, R, dbg = build(opt)
    errs = check(P + B + B + X, 'main') + check(R, 'rare')
    if opt.show:
        pre, gap, val, post = dbg
        for g in range(64):
            c = sum(i.cost for i in pre[(g + 1) % 64] + gap[g] + val[g] + post[g])
            print(g, c, len([i for i in pre[(g + 1) % 64] + gap[g] + val[g] + post[g] if i.k != 'label']), ' '.join(i.t.split()[0].replace('v_', '').replace('_f32', '') for i in gap[g] + val[g] + post[g] + pre[(g + 1) % 64] if i.k != 'label'))
    hdr = open('standalone__gqa_softmax__near_ridge.s.ref').read().split('\n')
    out = []
    for l in hdr:
        if l.startswith('; @launch'): break
        out.append(l)
    out.append('; @launch grid=(256,1,1) block=(256,1,1) lds=%d' % LDS_BYTES)
    out.append('.amdgcn_target "amdgcn-amd-amdhsa--gfx950"')
    out.append('.text')
    N = 'standalone__gqa_softmax__near_ridge_kernel'
    out += ['.globl ' + N, '.p2align 8', '.type %s,@function' % N, N + ':']
    for i in P: out.append(('' if i.k == 'label' else '    ') + i.t)
    out.append('.p2align 6')
    for i in B + X + R: out.append(('' if i.k == 'label' else '    ') + i.t)
    out += ['.section .rodata,"a"', '.p2align 6', '.amdhsa_kernel ' + N,
            '  .amdhsa_next_free_vgpr %d' % (256 + NA), '  .amdhsa_next_free_sgpr 72', '  .amdhsa_accum_offset 256',
            '  .amdhsa_group_segment_fixed_size 0', '  .amdhsa_kernarg_size 48', '  .amdhsa_user_sgpr_count 2',
            '  .amdhsa_user_sgpr_kernarg_segment_ptr 1', '  .amdhsa_system_sgpr_workgroup_id_x 1', '.end_amdhsa_kernel']
    open(opt.o, 'w').write('\n'.join(out) + '\n')
    print('wrote', opt.o, 'instrs: pro %d loop %d epi %d rare %d  hazards %d' % (len(P), len(B), len(X), len(R), errs))
main()
```

```python
import sys, argparse, struct

def f32bits(x): return struct.unpack('<I', struct.pack('<f', x))[0]

class I:
    __slots__ = ('t', 'k', 'r', 'w', 'cost', 'c', 'tag')
    def __init__(s, t, k, r=(), w=(), cost=4, c=(), tag=None):
        s.t = t; s.k = k; s.r = set(r); s.w = set(w); s.cost = cost; s.c = set(c); s.tag = tag

def vr(b, n=1): return ['v%d' % i for i in range(b, b + n)]
def ar(b, n=1): return ['a%d' % i for i in range(b, b + n)]
def vs(b, n): return 'v[%d:%d]' % (b, b + n - 1) if n > 1 else 'v%d' % b
def as_(b, n): return 'a[%d:%d]' % (b, b + n - 1) if n > 1 else 'a%d' % b

def O(q, db): return 32 * q + 4 * db
def LA(q): return 128 + 4 * q
def S(buf, q): return 144 + 32 * buf + 8 * q
def CI(q): return 208 + 4 * q
V_KADDR, V_VADDR, V_KBASE, V_VBASE = 224, 225, 226, 227
V_DMA = 228
V_MX = 232
V_F = 234
V_T = 238
V_TID = 248
V_STAMP = 249
def AQ(q, s): return 16 * q + 4 * s
def AK(kb, s): return 64 + 16 * kb + 4 * s
def AV(db): return 96 + 4 * db
A_ONE = 128
NA = 132
S_K, S_V, S_Q, S_O = 8, 12, 16, 20
S_PREV, S_CUR, S_NEXT, S_WK, S_WV, S_SO, S_T, S_T2, S_W, S_TMP, S_TMP2, S_C = 24, 25, 26, 27, 28, 29, 30, 31, 32, 33, 34, 35
S_TS = 36
S_WS = 40
S_IT = 44
PS = 1056
TILE = 16 * PS
SLOT = 2 * TILE
QREG = 2 * SLOT + TILE
LDS_BYTES = QREG + 4 * TILE
BIAS = 128
THRESH = 8.0
CSCALE = 1.4426950408889634 / (128 ** 0.5)

def mfma(d, a, b, c, a_acc=True, b_acc=False):
    A = as_(a, 4) if a_acc else vs(a, 4)
    B = as_(b, 4) if b_acc else vs(b, 4)
    rd = (ar(a, 4) if a_acc else vr(a, 4)) + (ar(b, 4) if b_acc else vr(b, 4))
    if c is None:
        return I('v_mfma_f32_16x16x32_bf16 %s, %s, %s, 0' % (vs(d, 4), A, B), 'mfma', rd, vr(d, 4), 8)
    return I('v_mfma_f32_16x16x32_bf16 %s, %s, %s, %s' % (vs(d, 4), A, B, vs(c, 4)), 'mfma', rd, vr(d, 4), 8, vr(c, 4))
def valu(t, r, w): return I(t, 'valu', r, w, 4)
def trans(t, r, w): return I(t, 'trans', r, w, 8)
def salu(t): return I(t, 'salu', (), (), 4)
def raw(t, cost=4): return I(t, 'other', (), (), cost)
def label(n): return I(n + ':', 'label', (), (), 0)
def nop(n): return I('s_nop %d' % n, 'nop', (), (), 4 * (n + 1))
def perm(op, a, b): return I('%s v%d, v%d' % (op, a, b), 'perm', vr(a) + vr(b), vr(a) + vr(b))

def kread(half, kb, s, dst_acc=True, dst=None, addr=V_KADDR):
    off = (8 * half + 4 * kb) * PS + s * 256
    if dst is None: dst = AK(kb, s)
    D = as_(dst, 4) if dst_acc else vs(dst, 4)
    return I('ds_read_b128 %s, v%d offset:%d' % (D, addr, off), 'ds', vr(addr), ar(dst, 4) if dst_acc else vr(dst, 4))
def vread(half, db, x):
    off = (8 * half + 4 * x) * PS + (db >> 1) * 256 + (db & 1) * 32
    dst = AV(db) + 2 * x
    return I('ds_read_b64_tr_b16 %s, v%d offset:%d' % (as_(dst, 2), V_VADDR, off), 'ds', vr(V_VADDR), ar(dst, 2))
def dma(kind, n, so, pol):
    srd = {'k': S_K, 'q': S_Q, 'v': S_V}[kind]
    return I('buffer_load_dwordx4 v%d, s[%d:%d], s%d offen offset:%d %slds' % (V_DMA + n, srd, srd + 3, so, n * PS, pol), 'vmem', vr(V_DMA + n))

def qk_mfmas(buf, first=False):
    out = []
    for q in range(4):
        for kb in range(2):
            d = S(buf, q) + 4 * kb
            for s in range(4):
                c = d if s else (None if first else CI(q))
                out.append(mfma(d, AK(kb, s), AQ(q, s), c, True, True))
    return out
def pv_mfmas(buf):
    out = []
    for q in range(4):
        for db in range(8):
            out.append(mfma(O(q, db), AV(db), S(buf, q), O(q, db), True, False))
        out.append(mfma(LA(q), A_ONE, S(buf, q), LA(q), True, False))
    return out

def m3(d, x, y, z): return valu('v_max3_f32 v%d, v%d, v%d, v%d' % (d, x, y, z), vr(x) + vr(y) + vr(z), vr(d))
def max_tree(buf):
    out = []
    a = S(buf, 0); b = S(buf, 2)
    m0, m1 = V_MX, V_MX + 1
    out.append(m3(m0, a, a + 1, a + 2))
    for i in range(6): out.append(m3(m0, m0, a + 3 + 2 * i, a + 4 + 2 * i))
    out.append(m3(m0, m0, a + 15, b))
    out.append(m3(m1, b + 1, b + 2, b + 3))
    for i in range(6): out.append(m3(m1, m1, b + 4 + 2 * i, b + 5 + 2 * i))
    out.append(valu('v_max_f32 v%d, v%d, v%d' % (m0, m0, m1), vr(m0) + vr(m1), vr(m0)))
    return out

def rowmax(buf, q, dst, tmp):
    a = S(buf, q); o = []
    o.append(m3(dst, a, a + 1, a + 2)); o.append(m3(dst, dst, a + 3, a + 4)); o.append(m3(dst, dst, a + 5, a + 6))
    o.append(valu('v_max_f32 v%d, v%d, v%d' % (dst, dst, a + 7), vr(dst) + vr(a + 7), vr(dst)))
    for op in ('v_permlane16_swap_b32', 'v_permlane32_swap_b32'):
        o.append(valu('v_mov_b32 v%d, v%d' % (tmp, dst), vr(dst), vr(tmp)))
        o.append(nop(1))
        o.append(perm(op, dst, tmp))
        o.append(nop(1))
        o.append(valu('v_max_f32 v%d, v%d, v%d' % (dst, dst, tmp), vr(dst) + vr(tmp), vr(dst)))
    return o

NQK, NPV = 32, 36
HALF = NQK + NPV
NG = 2 * HALF

def build(opt):
    pol = {0: '', 1: 'nt ', 2: 'sc1 nt ', 3: 'sc0 sc1 nt ', 4: 'sc0 nt ', 5: 'sc1 ', 6: 'sc0 sc1 '}[opt.nt]
    P = []
    def e(x): P.append(x)
    e(raw('s_cmp_ge_u32 s2, 256')); e(raw('s_cbranch_scc1 L_end'))
    e(raw('s_load_dwordx4 s[4:7], s[0:1], 0'))
    e(raw('s_load_dwordx4 s[44:47], s[0:1], 16'))
    if opt.stamp: e(raw('s_load_dwordx2 s[48:49], s[0:1], 40'))
    if opt.stamp: e(raw('s_memtime s[50:51]'))
    e(valu('v_mov_b32 v%d, v0' % V_TID, ['v0'], vr(V_TID)))
    e(valu('v_lshrrev_b32 v1, 6, v0', ['v0'], ['v1']))
    e(valu('v_and_b32 v2, 63, v0', ['v0'], ['v2']))
    e(raw('v_readfirstlane_b32 s%d, v1' % S_W))
    if opt.stamp: e(raw('v_mov_b32 v250, v2'))
    if opt.stamp: e(raw('s_memrealtime s[66:67]'))
    e(valu('v_bfe_u32 v3, v2, 2, 2', ['v2'], ['v3']))
    e(valu('v_and_b32 v4, 3, v2', ['v2'], ['v4']))
    e(valu('v_lshrrev_b32 v5, 4, v2', ['v2'], ['v5']))
    e(valu('v_lshlrev_b32 v6, 8, v3', ['v3'], ['v6']))
    e(valu('v_lshl_add_u32 v6, v5, 6, v6', ['v5', 'v6'], ['v6']))
    e(valu('v_lshl_add_u32 v6, v4, 4, v6', ['v4', 'v6'], ['v6']))
    e(valu('v_lshl_add_u32 v6, v1, 12, v6', ['v1', 'v6'], ['v6']))
    for n in range(4):
        e(valu('v_add_u32 v%d, %d, v6' % (V_DMA + n, BIAS - (PS - 1024) * n), ['v6'], vr(V_DMA + n)))
    e(valu('v_mul_u32_u24 v6, %d, v3' % PS, ['v3'], ['v6']))
    e(valu('v_lshl_add_u32 v6, v4, 6, v6', ['v4', 'v6'], ['v6']))
    e(valu('v_lshl_add_u32 v%d, v5, 4, v6' % V_KBASE, ['v5', 'v6'], vr(V_KBASE)))
    e(valu('v_mul_u32_u24 v6, %d, v5' % PS, ['v5'], ['v6']))
    e(valu('v_lshl_add_u32 v6, v3, 6, v6', ['v3', 'v6'], ['v6']))
    e(valu('v_lshl_add_u32 v6, v4, 3, v6', ['v4', 'v6'], ['v6']))
    e(valu('v_add_u32 v%d, %d, v6' % (V_VBASE, TILE), ['v6'], vr(V_VBASE)))
    e(salu('s_mul_i32 s%d, s%d, %d' % (S_WK, S_W, 4 * PS)))
    e(salu('s_add_u32 s%d, s%d, %d' % (S_WV, S_WK, TILE)))
    e(salu('s_lshl_b32 s%d, s2, 19' % S_TMP))
    e(salu('s_lshl_b32 s%d, s2, 16' % S_TMP2))
    e(raw('s_waitcnt lgkmcnt(0)'))
    def srd(d, lo, off, bias, size):
        e(salu('s_add_u32 s%d, s%d, s%d' % (d, lo, off))); e(salu('s_addc_u32 s%d, s%d, 0' % (d + 1, lo + 1)))
        if bias:
            e(salu('s_sub_u32 s%d, s%d, %d' % (d, d, bias))); e(salu('s_subb_u32 s%d, s%d, 0' % (d + 1, d + 1)))
        e(salu('s_mov_b32 s%d, %d' % (d + 2, size + bias))); e(salu('s_mov_b32 s%d, 0x20000' % (d + 3)))
    srd(S_K, 6, S_TMP, BIAS, 524288)
    e(salu('s_mov_b32 m0, s%d' % S_WK)); e(salu('s_mov_b32 s%d, 0' % S_SO))
    for n in range(4): e(dma('k', n, S_SO, pol))
    srd(S_Q, 4, S_TMP2, BIAS, 65536)
    e(salu('s_mul_i32 s%d, s%d, %d' % (S_PREV, S_W, TILE)))
    e(salu('s_add_u32 s%d, s%d, %d' % (S_PREV, S_PREV, QREG)))
    e(salu('s_mul_i32 s%d, s%d, 12288' % (S_CUR, S_W)))
    for g in range(4):
        e(salu('s_add_u32 m0, s%d, %d' % (S_PREV, g * 4 * PS)))
        e(salu('s_add_u32 s%d, s%d, %d' % (S_NEXT, S_CUR, g * 4096)))
        for n in range(4): e(dma('q', n, S_NEXT, pol))
    srd(S_V, 44, S_TMP, BIAS + 16384, 524288)
    srd(S_O, 46, S_TMP2, 0, 65536)
    def group(tk):
        e(salu('s_mov_b32 s%d, %d' % (S_SO, tk * 16384)))
        e(salu('s_add_u32 m0, s%d, %d' % (S_WK, (tk & 3) * SLOT)))
        e(nop(0))
        for n in range(4): e(dma('k', n, S_SO, pol))
        e(salu('s_add_u32 m0, s%d, %d' % (S_WV, ((tk - 1) & 3) * SLOT)))
        e(nop(0))
        for n in range(4): e(dma('v', n, S_SO, pol))
    group(1); group(2)
    e(raw('v_cmp_eq_u32 vcc, 0, v4'))
    e(valu('v_mov_b32 v6, 0x3f803f80', [], ['v6']))
    e(nop(0))
    e(valu('v_cndmask_b32 v6, 0, v6, vcc', ['v6'], ['v6']))
    for j in range(4): e(valu('v_accvgpr_write_b32 a%d, v6' % (A_ONE + j), ['v6'], ar(A_ONE + j)))
    for i in range(144): e(valu('v_mov_b32 v%d, 0' % i, [], vr(i)))
    e(valu('v_add_u32 v%d, s%d, v%d' % (V_KADDR, S_PREV, V_KBASE), vr(V_KBASE), vr(V_KADDR)))
    e(salu('s_mov_b32 s%d, 0x%08x' % (S_C, f32bits(CSCALE))))
    e(salu('s_mov_b32 s%d, 0x%08x' % (S_T, f32bits(THRESH))))
    for q in range(4):
        e(raw('s_waitcnt vmcnt(%d)' % (16 + 4 * (3 - q))))
        if opt.stamp and q == 3: e(raw('s_memtime s[52:53]'))
        for s in range(4): e(kread(q >> 1, q & 1, s, False, 144 + 16 * q + 4 * s))
        e(raw('s_waitcnt lgkmcnt(0)'))
        for s in range(4):
            for j in range(4):
                x = 144 + 16 * q + 4 * s + j
                t0, t1 = V_T + 2 * (j & 1), V_T + 2 * (j & 1) + 1
                e(valu('v_lshlrev_b32 v%d, 16, v%d' % (t0, x), vr(x), vr(t0)))
                e(valu('v_and_b32 v%d, 0xffff0000, v%d' % (t1, x), vr(x), vr(t1)))
                e(valu('v_mul_f32 v%d, s%d, v%d' % (t0, S_C, t0), vr(t0), vr(t0)))
                e(valu('v_mul_f32 v%d, s%d, v%d' % (t1, S_C, t1), vr(t1), vr(t1)))
                e(valu('v_cvt_pk_bf16_f32 v%d, v%d, v%d' % (t0, t0, t1), vr(t0, 2), vr(t0)))
                e(valu('v_accvgpr_write_b32 a%d, v%d' % (AQ(q, s) + j, t0), vr(t0), ar(AQ(q, s) + j)))
    e(valu('v_mov_b32 v%d, v%d' % (V_KADDR, V_KBASE), vr(V_KBASE), vr(V_KADDR)))
    e(raw('s_barrier'))
    for kb in range(2):
        for s in range(4): e(kread(0, kb, s))
    group(3)
    e(raw('s_waitcnt lgkmcnt(0)'))
    P += qk_mfmas(0, first=True)
    for kb in range(2):
        for s in range(4): e(kread(1, kb, s))
    for q in range(4):
        P += rowmax(0, q, V_T + q, V_T + 4)
        for r in range(8):
            e(valu('v_sub_f32 v%d, v%d, v%d' % (S(0, q) + r, S(0, q) + r, V_T + q), vr(S(0, q) + r) + vr(V_T + q), vr(S(0, q) + r)))
        for r in range(4):
            e(valu('v_sub_f32 v%d, 0, v%d' % (CI(q) + r, V_T + q), vr(V_T + q), vr(CI(q) + r)))
    e(salu('s_mov_b32 s%d, %d' % (S_PREV, 3 * SLOT)))
    e(salu('s_mov_b32 s%d, 0' % S_CUR))
    e(salu('s_mov_b64 vcc, 0'))
    e(salu('s_mov_b32 s%d, %d' % (S_NEXT, SLOT)))
    e(salu('s_mov_b32 s%d, %d' % (S_SO, 4 * 16384)))
    e(valu('v_mov_b32 v%d, v%d' % (V_VADDR, V_VBASE), vr(V_VBASE), vr(V_VADDR)))

    A0, B0, C0, D0 = 0, NQK, HALF, HALF + NQK
    mf = qk_mfmas(1) + pv_mfmas(0) + qk_mfmas(0) + pv_mfmas(1)
    mem = [[] for _ in range(NG)]
    fix = [[] for _ in range(NG)]
    end = [[] for _ in range(NG)]
    end[NG - 1] += [raw('s_cbranch_scc1 L_loop')]
    head = [raw('s_waitcnt lgkmcnt(0)')]
    mem[A0] += [raw('s_waitcnt vmcnt(16)'), raw('s_barrier')]
    end[B0 - 1] += [raw('s_waitcnt lgkmcnt(0)')]
    end[C0 - 1] += [raw('s_waitcnt lgkmcnt(0)')]
    end[D0 - 1] += [raw('s_waitcnt lgkmcnt(0)')]
    if opt.max:
        end[C0 - 1] = [raw('s_cbranch_vccnz L_rare2_0'), label('L_ret2_0')] + end[C0 - 1]
        end[NG - 1] = [raw('s_cbranch_vccnz L_rare2_1'), label('L_ret2_1')] + end[NG - 1]
    for ph, half in ((A0, 0), (C0, 1)):
        rs = [vread(half, db, x) for db in range(8) for x in range(2)]
        for i, r in enumerate(rs): mem[ph + opt.vpos[i]].append(r)
    for ph, half in ((B0, 0), (D0, 1)):
        rs = [kread(half, kb, s) for kb in range(2) for s in range(4)]
        for i, r in enumerate(rs): mem[ph + opt.kpos[i]].append(r)
    fix[opt.vpos[0]].append(valu('v_add_u32 v%d, s%d, v%d' % (V_KADDR, S_NEXT, V_KBASE), vr(V_KBASE), vr(V_KADDR)))
    if not opt.nodma:
        fix[opt.vdma[0] - opt.m0lead].append(salu('s_add_u32 m0, s%d, s%d' % (S_PREV, S_WV)))
        for n in range(4): mem[opt.vdma[n]].append(dma('v', n, S_SO, pol))
        fix[opt.kdma[0] - opt.m0lead].append(salu('s_add_u32 m0, s%d, s%d' % (S_CUR, S_WK)))
        for n in range(4): mem[opt.kdma[n]].append(dma('k', n, S_SO, pol))
    rot = [salu('s_mov_b32 s%d, s%d' % (S_PREV, S_CUR)), salu('s_mov_b32 s%d, s%d' % (S_CUR, S_NEXT)),
           salu('s_add_u32 s%d, s%d, %d' % (S_NEXT, S_NEXT, SLOT)), salu('s_cmp_eq_u32 s%d, %d' % (S_NEXT, 4 * SLOT)),
           salu('s_cselect_b32 s%d, 0, s%d' % (S_NEXT, S_NEXT)),
           valu('v_add_u32 v%d, s%d, v%d' % (V_VADDR, S_CUR, V_VBASE), vr(V_VBASE), vr(V_VADDR)),
           salu('s_add_u32 s%d, s%d, 16384' % (S_SO, S_SO)),
           salu('s_cmp_lt_u32 s%d, %d' % (S_SO, 36 * 16384))]
    assert max(opt.kdma + opt.vdma) < opt.rot[0]
    for x, g in zip(rot, opt.rot): fix[g].append(x)
    if opt.max:
        fix[opt.t2pos].append(salu('s_cmp_eq_u32 s%d, %d' % (S_SO, 35 * 16384)))
        fix[opt.t2pos].append(salu('s_cselect_b32 s%d, 0x7f800000, s%d' % (S_T2, S_T)))
    if opt.stamp:
        fix[0].append(raw('s_memtime s[%d:%d]' % (S_TS, S_TS + 1)))
        fix[3].append(raw('s_memrealtime s[68:69]'))
        fix[B0 + 8].append(salu('s_lshr_b32 s%d, s%d, 14' % (S_IT, S_SO)))
        fix[B0 + 17].append(raw('v_cmp_eq_u32 s[64:65], s%d, v250' % S_IT))
        fix[B0 + 17].append(raw('v_mov_b32 v251, s%d' % S_TS))
        fix[B0 + 26].append(raw('v_cndmask_b32 v%d, v%d, v251, s[64:65]' % (V_STAMP, V_STAMP)))
        fix[B0 + 26].append(raw('v_mov_b32 v251, s68'))
        fix[B0 + 35].append(raw('v_cndmask_b32 v252, v252, v251, s[64:65]'))
    val = [[] for _ in range(NG)]
    entry_ops = []
    def used(g): return sum(x.cost for x in mem[g] + fix[g] + end[g] + val[g]) + (4 if g == NG - 1 else 0)
    for buf, pv0, treg, idx in ((1, B0, S_T, 0), (0, D0, S_T2, 1)):
        start = pv0 + (opt.start if buf else opt.start2)
        H = (max_tree(buf) + [I('v_cmp_lt_f32 vcc, s%d, v%d' % (treg, V_MX), 'valu', vr(V_MX), ['vcc'])]) if opt.max else []
        BR = [raw('s_cbranch_vccnz L_rare1_%d' % idx), label('L_ret1_%d' % idx)] if opt.max else []
        exps = []; cvts = []
        for q in range(4):
            for j in range(8):
                r = S(buf, q) + j
                exps.append(trans('v_exp_f32 v%d, v%d' % (r, r), vr(r), vr(r)))
            for j in range(4):
                r = S(buf, q) + 2 * j; d = S(buf, q) + j
                cvts.append(valu('v_cvt_pk_bf16_f32 v%d, v%d, v%d' % (d, r, r + 1), vr(r, 2), vr(d)))
        if opt.novalu: H, exps, cvts = [], [], []; BR = BR[1:]
        ne = 0; nc = 0; brdone = not BR; exp_gap = {}
        gi = 0
        span = opt.span
        while H or not brdone or ne < len(exps) or nc < len(cvts):
            ga = start + gi; g = ga % NG
            def put(x, is_e):
                val[g].append(x)
                if is_e and buf == 0 and ga < NG: entry_ops.append(x)
            def cvt_ready(): return nc < len(cvts) and ne >= 2 * nc + 2 and exp_gap[2 * nc + 1] < ga
            while True:
                free = (12 if g in opt.over else 8) - used(g)
                if free <= 0: break
                if H:
                    put(H.pop(0), False)
                    if not H: break
                    continue
                if not brdone:
                    for x in BR: put(x, False)
                    brdone = True; continue
                if free >= 8 and ne < len(exps) and not (cvt_ready() and ne - 2 * nc >= opt.lag):
                    put(exps[ne], True); exp_gap[ne] = ga; ne += 1; continue
                if cvt_ready():
                    put(cvts[nc], True); nc += 1; continue
                break
            gi += 1
            assert gi < 3 * HALF
        print('stream buf%d: start %d end %d (next PV starts at %d)' % (buf, start, start + gi - 1, pv0 + HALF))
    B = [label('L_loop')] + head
    for g in range(NG):
        if not opt.nomfma: B.append(mf[g])
        B += mem[g] + val[g] + fix[g] + end[g]
    P += entry_ops
    if opt.stamp: e(raw('s_memtime s[54:55]'))

    X = []
    def x(i): X.append(i)
    if opt.stamp: x(raw('s_memtime s[56:57]'))
    a = V_T + 4
    x(valu('v_and_b32 v%d, 15, v%d' % (a, V_TID), vr(V_TID), vr(a)))
    x(valu('v_lshlrev_b32 v%d, 8, v%d' % (a, a), vr(a), vr(a)))
    x(valu('v_bfe_u32 v%d, v%d, 4, 1' % (a + 1, V_TID), vr(V_TID), vr(a + 1)))
    x(valu('v_lshl_add_u32 v%d, v%d, 5, v%d' % (a, a + 1, a), vr(a, 2), vr(a)))
    x(valu('v_bfe_u32 v%d, v%d, 5, 1' % (a + 1, V_TID), vr(V_TID), vr(a + 1)))
    x(valu('v_lshl_add_u32 v%d, v%d, 4, v%d' % (a, a + 1, a), vr(a, 2), vr(a)))
    x(salu('s_lshl_b32 s%d, s%d, 14' % (S_TMP, S_W)))
    x(nop(1))
    for q in range(4):
        x(trans('v_rcp_f32 v%d, v%d' % (V_T + q, LA(q)), vr(LA(q)), vr(V_T + q)))
    spol = ' nt' if opt.snt else ''
    for q in range(4):
        for hb in range(2):
            o = O(q, 4 * hb)
            for r in range(16):
                x(valu('v_mul_f32 v%d, v%d, v%d' % (o + r, o + r, V_T + q), vr(o + r) + vr(V_T + q), vr(o + r)))
            for r in range(8):
                x(valu('v_cvt_pk_bf16_f32 v%d, v%d, v%d' % (o + r, o + 2 * r, o + 2 * r + 1), vr(o + 2 * r, 2), vr(o + r)))
            x(nop(1))
            for p in range(2):
                d = o + 4 * p
                x(perm('v_permlane16_swap_b32', d, d + 2)); x(perm('v_permlane16_swap_b32', d + 1, d + 3))
            for p in range(2):
                d = o + 4 * p
                x(I('buffer_store_dwordx4 %s, v%d, s[%d:%d], s%d offen offset:%d%s' % (vs(d, 4), a, S_O, S_O + 3, S_TMP, 128 * hb + 64 * p, spol), 'vmem', vr(d, 4) + vr(a)))
        if q < 3: x(salu('s_add_u32 s%d, s%d, 4096' % (S_TMP, S_TMP)))
    if opt.stamp:
        x(raw('s_waitcnt vmcnt(0)'))
        x(raw('s_memtime s[58:59]'))
        x(raw('s_memrealtime s[60:61]'))
        x(raw('s_getreg_b32 s62, hwreg(HW_REG_XCC_ID)'))
        x(raw('s_waitcnt lgkmcnt(0)'))
        for i, sr in enumerate((50, 52, 54, 56, 58, 60, 61, 62, 66, 67)):
            x(raw('v_writelane_b32 v%d, s%d, %d' % (V_STAMP, sr, 40 + i)))
        x(salu('s_mov_b32 s%d, s48' % S_WS)); x(salu('s_mov_b32 s%d, s49' % (S_WS + 1)))
        x(salu('s_mov_b32 s%d, %d' % (S_WS + 2, 512 * 1024))); x(salu('s_mov_b32 s%d, 0x20000' % (S_WS + 3)))
        x(salu('s_lshl_b32 s%d, s2, 10' % S_TMP))
        x(valu('v_lshlrev_b32 v%d, 2, v%d' % (a, V_TID), vr(V_TID), vr(a)))
        x(raw('buffer_store_dword v%d, v%d, s[%d:%d], s%d offen' % (V_STAMP, a, S_WS, S_WS + 3, S_TMP)))
        x(salu('s_add_u32 s%d, s%d, %d' % (S_TMP, S_TMP, 256 * 1024)))
        x(raw('buffer_store_dword v252, v%d, s[%d:%d], s%d offen' % (a, S_WS, S_WS + 3, S_TMP)))
    x(label('L_end'))
    x(raw('s_endpgm'))

    R = []
    if opt.max:
        for idx, buf in ((0, 1), (1, 0)):
            R.append(label('L_rare1_%d' % idx))
            for q in range(4):
                d = V_T + q
                R += rowmax(buf, q, d, V_T + 4)
                R.append(valu('v_max_f32 v%d, 0, v%d' % (d, d), vr(d), vr(d)))
                R.append(trans('v_exp_f32 v%d, -v%d' % (V_F + q, d), vr(d), vr(V_F + q)))
                for r in range(8):
                    R.append(valu('v_sub_f32 v%d, v%d, v%d' % (S(buf, q) + r, S(buf, q) + r, d), vr(S(buf, q) + r) + vr(d), vr(S(buf, q) + r)))
                for r in range(4):
                    R.append(valu('v_sub_f32 v%d, v%d, v%d' % (CI(q) + r, CI(q) + r, d), vr(CI(q) + r) + vr(d), vr(CI(q) + r)))
            R.append(raw('s_branch L_ret1_%d' % idx))
        for idx in range(2):
            R.append(label('L_rare2_%d' % idx))
            R.append(nop(15))
            for q in range(4):
                for i in list(range(32 * q, 32 * q + 32)) + [LA(q)]:
                    R.append(valu('v_mul_f32 v%d, v%d, v%d' % (i, i, V_F + q), vr(i) + vr(V_F + q), vr(i)))
            R.append(nop(1))
            R.append(raw('s_branch L_ret2_%d' % idx))
    return P, B, X, R, (mem, val, fix, end)

def states(i):
    if i.k == 'label': return 0
    if i.k == 'nop': return int(i.t.split()[1]) + 1
    return 1
def check(seq, name):
    errs = 0
    for n, c in enumerate(seq):
        if c.k in ('label', 'nop', 'salu', 'other'): continue
        dist = 0
        for p in reversed(seq[max(0, n - 40):n]):
            need = 0
            if p.k == 'mfma':
                if c.k == 'mfma':
                    if p.w & c.r: need = 8
                    if (p.w & c.c) and p.w != c.c: need = max(need, 6)
                else:
                    if p.w & (c.r | c.w): need = 8
                    if c.k in ('valu', 'trans', 'perm') and (p.c & c.w): need = max(need, 3)
            elif p.k in ('valu', 'trans', 'perm'):
                if c.k == 'mfma' and (p.w & (c.r | c.c)): need = 2
                if c.k == 'perm' and (p.w & c.r): need = 2
                if p.k == 'trans' and c.k in ('valu', 'perm', 'vmem', 'ds') and (p.w & c.r): need = max(need, 1)
            elif p.k == 'vmem' and 'store' in p.t:
                if c.k in ('valu', 'trans', 'perm') and (p.r & c.w): need = 2
            if need > dist:
                print('HAZARD[%s] need %d have %d: %s  ->  %s' % (name, need, dist, p.t, c.t)); errs += 1
            dist += states(p)
    return errs

def dataflow_check(B):
    seq = B + B
    last = {}
    errs = 0
    for n, c in enumerate(seq):
        if n >= len(B):
            if c.k == 'mfma' and not c.t.split(',')[2].strip().startswith('a'):
                for r in c.r:
                    if r.startswith('v') and 'cvt' not in last.get(r, ''):
                        print('DATAFLOW: P operand %s last written by %s at %s' % (r, last.get(r), c.t)); errs += 1
            if c.k == 'trans' and 'exp' in c.t:
                for r in c.r:
                    if 'mfma' not in last.get(r, ''): print('DATAFLOW: exp src %s last written by %s' % (r, last.get(r))); errs += 1
            if 'cvt_pk' in c.t:
                for r in c.r:
                    if 'exp' not in last.get(r, ''): print('DATAFLOW: cvt src %s last written by %s' % (r, last.get(r))); errs += 1
            if 'max3' in c.t:
                for r in c.r:
                    if 'mfma' not in last.get(r, '') and 'max' not in last.get(r, ''): print('DATAFLOW: max src %s last written by %s' % (r, last.get(r))); errs += 1
        for r in c.w: last[r] = c.t
    return errs

def main():
    ap = argparse.ArgumentParser()
    ap.add_argument('-o', default='k.s')
    ap.add_argument('--nt', type=int, default=1)
    ap.add_argument('--snt', type=int, default=0)
    ap.add_argument('--stamp', type=int, default=0)
    ap.add_argument('--nodma', type=int, default=0)
    ap.add_argument('--novalu', type=int, default=0)
    ap.add_argument('--nomfma', type=int, default=0)
    ap.add_argument('--max', type=int, default=1)
    ap.add_argument('--start', type=int, default=0)
    ap.add_argument('--span', type=int, default=68)
    ap.add_argument('--lag', type=int, default=100)
    ap.add_argument('--m0lead', type=int, default=1)
    ap.add_argument('--vdma', default='33,35,37,39')
    ap.add_argument('--kdma', default='101,103,105,107')
    ap.add_argument('--vpos', default='1,3,5,7,9,11,13,15,17,19,21,23,25,26,27,28')
    ap.add_argument('--kpos', default='0,2,4,6,8,9,10,11')
    ap.add_argument('--rot', default='131,131,132,132,133,133,134,134')
    ap.add_argument('--t2pos', type=int, default=97)
    ap.add_argument('--show', type=int, default=0)
    ap.add_argument('--over', default='-1')
    ap.add_argument('--start2', type=int, default=0)
    opt = ap.parse_args()
    for k in ('vdma', 'kdma', 'vpos', 'kpos', 'rot', 'over'): setattr(opt, k, [int(x) for x in getattr(opt, k).split(',')])
    P, B, X, R, dbg = build(opt)
    errs = check(P + B + B + X, 'main') + check(R, 'rare')
    if not (opt.novalu or opt.nomfma): errs += dataflow_check(B)
    mem, val, fix, end = dbg
    tot = 0
    for g in range(NG):
        l = [i for i in mem[g] + val[g] + fix[g] + end[g] if i.k != 'label']
        c = sum(i.cost for i in l) + (4 if g == NG - 1 else 0)
        tot += max(16, 8 + c)
        if opt.show: print(g, c, ' '.join(i.t.split()[0].replace('v_', '').replace('_f32', '') for i in l))
    print('model cycles/iter', tot)
    hdr = open('standalone__gqa_softmax__near_ridge.s.ref').read().split('\n')
    out = []
    for l in hdr:
        if l.startswith('; @launch'): break
        out.append(l)
    out.append('; @launch grid=(256,1,1) block=(256,1,1) lds=%d' % LDS_BYTES)
    out.append('.amdgcn_target "amdgcn-amd-amdhsa--gfx950"')
    out.append('.text')
    N = 'standalone__gqa_softmax__near_ridge_kernel'
    out += ['.globl ' + N, '.p2align 8', '.type %s,@function' % N, N + ':']
    for i in P: out.append(('' if i.k == 'label' else '    ') + i.t)
    out.append('.p2align 6')
    for i in B + X + R: out.append(('' if i.k == 'label' else '    ') + i.t)
    out += ['.section .rodata,"a"', '.p2align 6', '.amdhsa_kernel ' + N,
            '  .amdhsa_next_free_vgpr %d' % (256 + NA), '  .amdhsa_next_free_sgpr 72', '  .amdhsa_accum_offset 256',
            '  .amdhsa_group_segment_fixed_size 0', '  .amdhsa_kernarg_size 48', '  .amdhsa_user_sgpr_count 2',
            '  .amdhsa_user_sgpr_kernarg_segment_ptr 1', '  .amdhsa_system_sgpr_workgroup_id_x 1', '.end_amdhsa_kernel']
    open(opt.o, 'w').write('\n'.join(out) + '\n')
    print('wrote', opt.o, 'instrs: pro %d loop %d epi %d rare %d  errors %d' % (len(P), len(B), len(X), len(R), errs))
main()
```

```python
import sys, argparse, struct

def f32bits(x): return struct.unpack('<I', struct.pack('<f', x))[0]

class I:
    __slots__ = ('t', 'k', 'r', 'w', 'cost', 'c', 'tag')
    def __init__(s, t, k, r=(), w=(), cost=4, c=(), tag=None):
        s.t = t; s.k = k; s.r = set(r); s.w = set(w); s.cost = cost; s.c = set(c); s.tag = tag

def vr(b, n=1): return ['v%d' % i for i in range(b, b + n)]
def ar(b, n=1): return ['a%d' % i for i in range(b, b + n)]
def vs(b, n): return 'v[%d:%d]' % (b, b + n - 1) if n > 1 else 'v%d' % b
def as_(b, n): return 'a[%d:%d]' % (b, b + n - 1) if n > 1 else 'a%d' % b

def O(q, db): return 32 * q + 4 * db
def LA(q): return 128 + 4 * q
def S(buf, q): return 144 + 32 * buf + 8 * q
def CI(q): return 208 + 4 * q
V_KADDR, V_VADDR, V_KBASE, V_VBASE = 224, 225, 226, 227
V_DMA = 228
V_MX = 232
V_F = 234
V_T = 238
V_TID = 248
V_STAMP = 249
def AQ(q, s): return 16 * q + 4 * s
def AK(kb, s): return 64 + 16 * kb + 4 * s
def AV(db): return 96 + 4 * db
A_ONE = 128
NA = 132
S_K, S_V, S_Q, S_O = 8, 12, 16, 20
S_PREV, S_CUR, S_NEXT, S_WK, S_WV, S_SO, S_T, S_T2, S_W, S_TMP, S_TMP2, S_C = 24, 25, 26, 27, 28, 29, 30, 31, 32, 33, 34, 35
S_TS = 36
S_WS = 40
S_IT = 44
PS = 1056
TILE = 16 * PS
SLOT = 2 * TILE
QREG = 2 * SLOT + TILE
LDS_BYTES = QREG + 4 * TILE
BIAS = 128
THRESH = 8.0
CSCALE = 1.4426950408889634 / (128 ** 0.5)

def mfma(d, a, b, c, a_acc=True, b_acc=False):
    A = as_(a, 4) if a_acc else vs(a, 4)
    B = as_(b, 4) if b_acc else vs(b, 4)
    rd = (ar(a, 4) if a_acc else vr(a, 4)) + (ar(b, 4) if b_acc else vr(b, 4))
    if c is None:
        return I('v_mfma_f32_16x16x32_bf16 %s, %s, %s, 0' % (vs(d, 4), A, B), 'mfma', rd, vr(d, 4), 8)
    return I('v_mfma_f32_16x16x32_bf16 %s, %s, %s, %s' % (vs(d, 4), A, B, vs(c, 4)), 'mfma', rd, vr(d, 4), 8, vr(c, 4))
def valu(t, r, w): return I(t, 'valu', r, w, 4)
def trans(t, r, w): return I(t, 'trans', r, w, 8)
def salu(t): return I(t, 'salu', (), (), 4)
def raw(t, cost=4): return I(t, 'other', (), (), cost)
def label(n): return I(n + ':', 'label', (), (), 0)
def nop(n): return I('s_nop %d' % n, 'nop', (), (), 4 * (n + 1))
def perm(op, a, b): return I('%s v%d, v%d' % (op, a, b), 'perm', vr(a) + vr(b), vr(a) + vr(b))

def kread(half, kb, s, dst_acc=True, dst=None, addr=V_KADDR):
    off = (8 * half + 4 * kb) * PS + s * 256
    if dst is None: dst = AK(kb, s)
    D = as_(dst, 4) if dst_acc else vs(dst, 4)
    return I('ds_read_b128 %s, v%d offset:%d' % (D, addr, off), 'ds', vr(addr), ar(dst, 4) if dst_acc else vr(dst, 4))
def vread(half, db, x):
    off = (8 * half + 4 * x) * PS + (db >> 1) * 256 + (db & 1) * 32
    dst = AV(db) + 2 * x
    return I('ds_read_b64_tr_b16 %s, v%d offset:%d' % (as_(dst, 2), V_VADDR, off), 'ds', vr(V_VADDR), ar(dst, 2))
def dma(kind, n, so, pol):
    srd = {'k': S_K, 'q': S_Q, 'v': S_V}[kind]
    return I('buffer_load_dwordx4 v%d, s[%d:%d], s%d offen offset:%d %slds' % (V_DMA + n, srd, srd + 3, so, n * PS, pol), 'vmem', vr(V_DMA + n))

def qk_mfmas(buf, first=False):
    out = []
    for q in range(4):
        for kb in range(2):
            d = S(buf, q) + 4 * kb
            for s in range(4):
                c = d if s else (None if first else CI(q))
                out.append(mfma(d, AK(kb, s), AQ(q, s), c, True, True))
    return out
def pv_mfmas(buf):
    out = []
    for q in range(4):
        for db in range(8):
            out.append(mfma(O(q, db), AV(db), S(buf, q), O(q, db), True, False))
        out.append(mfma(LA(q), A_ONE, S(buf, q), LA(q), True, False))
    return out

def m3(d, x, y, z): return valu('v_max3_f32 v%d, v%d, v%d, v%d' % (d, x, y, z), vr(x) + vr(y) + vr(z), vr(d))
def max_tree(buf):
    out = []
    a = S(buf, 0); b = S(buf, 2)
    m0, m1 = V_MX, V_MX + 1
    out.append(m3(m0, a, a + 1, a + 2))
    for i in range(6): out.append(m3(m0, m0, a + 3 + 2 * i, a + 4 + 2 * i))
    out.append(m3(m0, m0, a + 15, b))
    out.append(m3(m1, b + 1, b + 2, b + 3))
    for i in range(6): out.append(m3(m1, m1, b + 4 + 2 * i, b + 5 + 2 * i))
    out.append(valu('v_max_f32 v%d, v%d, v%d' % (m0, m0, m1), vr(m0) + vr(m1), vr(m0)))
    return out

def rowmax(buf, q, dst, tmp):
    a = S(buf, q); o = []
    o.append(m3(dst, a, a + 1, a + 2)); o.append(m3(dst, dst, a + 3, a + 4)); o.append(m3(dst, dst, a + 5, a + 6))
    o.append(valu('v_max_f32 v%d, v%d, v%d' % (dst, dst, a + 7), vr(dst) + vr(a + 7), vr(dst)))
    for op in ('v_permlane16_swap_b32', 'v_permlane32_swap_b32'):
        o.append(valu('v_mov_b32 v%d, v%d' % (tmp, dst), vr(dst), vr(tmp)))
        o.append(nop(1))
        o.append(perm(op, dst, tmp))
        o.append(nop(1))
        o.append(valu('v_max_f32 v%d, v%d, v%d' % (dst, dst, tmp), vr(dst) + vr(tmp), vr(dst)))
    return o

NQK, NPV = 32, 36
HALF = NQK + NPV
NG = 2 * HALF

def build(opt):
    pol = {0: '', 1: 'nt ', 2: 'sc1 nt ', 3: 'sc0 sc1 nt ', 4: 'sc0 nt ', 5: 'sc1 ', 6: 'sc0 sc1 '}[opt.nt]
    P = []
    def e(x): P.append(x)
    e(raw('s_cmp_ge_u32 s2, 256')); e(raw('s_cbranch_scc1 L_end'))
    e(raw('s_load_dwordx4 s[4:7], s[0:1], 0'))
    e(raw('s_load_dwordx4 s[44:47], s[0:1], 16'))
    if opt.stamp: e(raw('s_load_dwordx2 s[48:49], s[0:1], 40'))
    if opt.stamp: e(raw('s_memtime s[50:51]'))
    e(valu('v_mov_b32 v%d, v0' % V_TID, ['v0'], vr(V_TID)))
    e(valu('v_lshrrev_b32 v1, 6, v0', ['v0'], ['v1']))
    e(valu('v_and_b32 v2, 63, v0', ['v0'], ['v2']))
    e(raw('v_readfirstlane_b32 s%d, v1' % S_W))
    if opt.stamp: e(raw('v_mov_b32 v250, v2'))
    if opt.stamp: e(raw('s_memrealtime s[66:67]'))
    e(valu('v_bfe_u32 v3, v2, 2, 2', ['v2'], ['v3']))
    e(valu('v_and_b32 v4, 3, v2', ['v2'], ['v4']))
    e(valu('v_lshrrev_b32 v5, 4, v2', ['v2'], ['v5']))
    e(valu('v_lshlrev_b32 v6, 8, v3', ['v3'], ['v6']))
    e(valu('v_lshl_add_u32 v6, v5, 6, v6', ['v5', 'v6'], ['v6']))
    e(valu('v_lshl_add_u32 v6, v4, 4, v6', ['v4', 'v6'], ['v6']))
    e(valu('v_lshl_add_u32 v6, v1, 12, v6', ['v1', 'v6'], ['v6']))
    for n in range(4):
        e(valu('v_add_u32 v%d, %d, v6' % (V_DMA + n, BIAS - (PS - 1024) * n), ['v6'], vr(V_DMA + n)))
    e(valu('v_mul_u32_u24 v6, %d, v3' % PS, ['v3'], ['v6']))
    e(valu('v_lshl_add_u32 v6, v4, 6, v6', ['v4', 'v6'], ['v6']))
    e(valu('v_lshl_add_u32 v%d, v5, 4, v6' % V_KBASE, ['v5', 'v6'], vr(V_KBASE)))
    e(valu('v_mul_u32_u24 v6, %d, v5' % PS, ['v5'], ['v6']))
    e(valu('v_lshl_add_u32 v6, v3, 6, v6', ['v3', 'v6'], ['v6']))
    e(valu('v_lshl_add_u32 v6, v4, 3, v6', ['v4', 'v6'], ['v6']))
    e(valu('v_add_u32 v%d, %d, v6' % (V_VBASE, TILE), ['v6'], vr(V_VBASE)))
    e(salu('s_mul_i32 s%d, s%d, %d' % (S_WK, S_W, 4 * PS)))
    e(salu('s_add_u32 s%d, s%d, %d' % (S_WV, S_WK, TILE)))
    e(salu('s_lshl_b32 s%d, s2, 19' % S_TMP))
    e(salu('s_lshl_b32 s%d, s2, 16' % S_TMP2))
    e(raw('s_waitcnt lgkmcnt(0)'))
    def srd(d, lo, off, bias, size):
        e(salu('s_add_u32 s%d, s%d, s%d' % (d, lo, off))); e(salu('s_addc_u32 s%d, s%d, 0' % (d + 1, lo + 1)))
        if bias:
            e(salu('s_sub_u32 s%d, s%d, %d' % (d, d, bias))); e(salu('s_subb_u32 s%d, s%d, 0' % (d + 1, d + 1)))
        e(salu('s_mov_b32 s%d, %d' % (d + 2, size + bias))); e(salu('s_mov_b32 s%d, 0x20000' % (d + 3)))
    srd(S_K, 6, S_TMP, BIAS, 524288)
    e(salu('s_mov_b32 m0, s%d' % S_WK)); e(salu('s_mov_b32 s%d, 0' % S_SO))
    for n in range(4): e(dma('k', n, S_SO, pol))
    srd(S_Q, 4, S_TMP2, BIAS, 65536)
    e(salu('s_mul_i32 s%d, s%d, %d' % (S_PREV, S_W, TILE)))
    e(salu('s_add_u32 s%d, s%d, %d' % (S_PREV, S_PREV, QREG)))
    e(salu('s_mul_i32 s%d, s%d, 12288' % (S_CUR, S_W)))
    for g in range(4):
        e(salu('s_add_u32 m0, s%d, %d' % (S_PREV, g * 4 * PS)))
        e(salu('s_add_u32 s%d, s%d, %d' % (S_NEXT, S_CUR, g * 4096)))
        for n in range(4): e(dma('q', n, S_NEXT, pol))
    srd(S_V, 44, S_TMP, BIAS + 16384, 524288)
    srd(S_O, 46, S_TMP2, 0, 65536)
    def group(tk):
        e(salu('s_mov_b32 s%d, %d' % (S_SO, tk * 16384)))
        e(salu('s_add_u32 m0, s%d, %d' % (S_WK, (tk & 3) * SLOT)))
        e(nop(0))
        for n in range(4): e(dma('k', n, S_SO, pol))
        e(salu('s_add_u32 m0, s%d, %d' % (S_WV, ((tk - 1) & 3) * SLOT)))
        e(nop(0))
        for n in range(4): e(dma('v', n, S_SO, pol))
    group(1); group(2)
    e(raw('v_cmp_eq_u32 vcc, 0, v4'))
    e(valu('v_mov_b32 v6, 0x3f803f80', [], ['v6']))
    e(nop(0))
    e(valu('v_cndmask_b32 v6, 0, v6, vcc', ['v6'], ['v6']))
    for j in range(4): e(valu('v_accvgpr_write_b32 a%d, v6' % (A_ONE + j), ['v6'], ar(A_ONE + j)))
    for i in range(144): e(valu('v_mov_b32 v%d, 0' % i, [], vr(i)))
    e(valu('v_add_u32 v%d, s%d, v%d' % (V_KADDR, S_PREV, V_KBASE), vr(V_KBASE), vr(V_KADDR)))
    e(salu('s_mov_b32 s%d, 0x%08x' % (S_C, f32bits(CSCALE))))
    e(salu('s_mov_b32 s%d, 0x%08x' % (S_T, f32bits(THRESH))))
    for q in range(4):
        e(raw('s_waitcnt vmcnt(%d)' % (16 + 4 * (3 - q))))
        if opt.stamp and q == 3: e(raw('s_memtime s[52:53]'))
        for s in range(4): e(kread(q >> 1, q & 1, s, False, 144 + 16 * q + 4 * s))
        e(raw('s_waitcnt lgkmcnt(0)'))
        for s in range(4):
            for j in range(4):
                x = 144 + 16 * q + 4 * s + j
                t0, t1 = V_T + 2 * (j & 1), V_T + 2 * (j & 1) + 1
                e(valu('v_lshlrev_b32 v%d, 16, v%d' % (t0, x), vr(x), vr(t0)))
                e(valu('v_and_b32 v%d, 0xffff0000, v%d' % (t1, x), vr(x), vr(t1)))
                e(valu('v_mul_f32 v%d, s%d, v%d' % (t0, S_C, t0), vr(t0), vr(t0)))
                e(valu('v_mul_f32 v%d, s%d, v%d' % (t1, S_C, t1), vr(t1), vr(t1)))
                e(valu('v_cvt_pk_bf16_f32 v%d, v%d, v%d' % (t0, t0, t1), vr(t0, 2), vr(t0)))
                e(valu('v_accvgpr_write_b32 a%d, v%d' % (AQ(q, s) + j, t0), vr(t0), ar(AQ(q, s) + j)))
    e(valu('v_mov_b32 v%d, v%d' % (V_KADDR, V_KBASE), vr(V_KBASE), vr(V_KADDR)))
    e(raw('s_barrier'))
    for kb in range(2):
        for s in range(4): e(kread(0, kb, s))
    group(3)
    e(raw('s_waitcnt lgkmcnt(0)'))
    P += qk_mfmas(0, first=True)
    for kb in range(2):
        for s in range(4): e(kread(1, kb, s))
    for q in range(4):
        P += rowmax(0, q, V_T + q, V_T + 4)
        for r in range(8):
            e(valu('v_sub_f32 v%d, v%d, v%d' % (S(0, q) + r, S(0, q) + r, V_T + q), vr(S(0, q) + r) + vr(V_T + q), vr(S(0, q) + r)))
        for r in range(4):
            e(valu('v_sub_f32 v%d, 0, v%d' % (CI(q) + r, V_T + q), vr(V_T + q), vr(CI(q) + r)))
    e(salu('s_mov_b32 s%d, %d' % (S_PREV, 3 * SLOT)))
    e(salu('s_mov_b32 s%d, 0' % S_CUR))
    e(salu('s_mov_b64 vcc, 0'))
    e(salu('s_mov_b32 s%d, %d' % (S_NEXT, SLOT)))
    e(salu('s_mov_b32 s%d, %d' % (S_SO, 4 * 16384)))
    e(valu('v_mov_b32 v%d, v%d' % (V_VADDR, V_VBASE), vr(V_VBASE), vr(V_VADDR)))

    A0, B0, C0, D0 = 0, NQK, HALF, HALF + NQK
    mf = qk_mfmas(1) + pv_mfmas(0) + qk_mfmas(0) + pv_mfmas(1)
    mem = [[] for _ in range(NG)]
    fix = [[] for _ in range(NG)]
    end = [[] for _ in range(NG)]
    end[NG - 1] += [raw('s_cbranch_scc1 L_loop')]
    head = [raw('s_waitcnt lgkmcnt(0)')]
    mem[A0] += [raw('s_waitcnt vmcnt(16)'), raw('s_barrier')]
    end[B0 - 1] += [raw('s_waitcnt lgkmcnt(0)')]
    end[C0 - 1] += [raw('s_waitcnt lgkmcnt(0)')]
    end[D0 - 1] += [raw('s_waitcnt lgkmcnt(0)')]
    if opt.max:
        end[C0 - 1] = [raw('s_cbranch_vccnz L_rare2_0'), label('L_ret2_0')] + end[C0 - 1]
        end[NG - 1] = [raw('s_cbranch_vccnz L_rare2_1'), label('L_ret2_1')] + end[NG - 1]
    for ph, half in ((A0, 0), (C0, 1)):
        rs = [vread(half, db, x) for db in range(8) for x in range(2)]
        for i, r in enumerate(rs): mem[ph + opt.vpos[i]].append(r)
    for ph, half in ((B0, 0), (D0, 1)):
        rs = [kread(half, kb, s) for kb in range(2) for s in range(4)]
        for i, r in enumerate(rs): mem[ph + opt.kpos[i]].append(r)
    fix[opt.vpos[0]].append(valu('v_add_u32 v%d, s%d, v%d' % (V_KADDR, S_NEXT, V_KBASE), vr(V_KBASE), vr(V_KADDR)))
    if not opt.nodma:
        fix[opt.vdma[0] - opt.m0lead].append(salu('s_add_u32 m0, s%d, s%d' % (S_PREV, S_WV)))
        for n in range(4): mem[opt.vdma[n]].append(dma('v', n, S_SO, pol))
        fix[opt.kdma[0] - opt.m0lead].append(salu('s_add_u32 m0, s%d, s%d' % (S_CUR, S_WK)))
        for n in range(4): mem[opt.kdma[n]].append(dma('k', n, S_SO, pol))
    rot = [salu('s_mov_b32 s%d, s%d' % (S_PREV, S_CUR)), salu('s_mov_b32 s%d, s%d' % (S_CUR, S_NEXT)),
           salu('s_add_u32 s%d, s%d, %d' % (S_NEXT, S_NEXT, SLOT)), salu('s_cmp_eq_u32 s%d, %d' % (S_NEXT, 4 * SLOT)),
           salu('s_cselect_b32 s%d, 0, s%d' % (S_NEXT, S_NEXT)),
           valu('v_add_u32 v%d, s%d, v%d' % (V_VADDR, S_CUR, V_VBASE), vr(V_VBASE), vr(V_VADDR)),
           salu('s_add_u32 s%d, s%d, 16384' % (S_SO, S_SO)),
           salu('s_cmp_lt_u32 s%d, %d' % (S_SO, 36 * 16384))]
    assert max(opt.kdma + opt.vdma) < opt.rot[0]
    for x, g in zip(rot, opt.rot): fix[g].append(x)
    if opt.max:
        fix[opt.t2pos].append(salu('s_cmp_eq_u32 s%d, %d' % (S_SO, 35 * 16384)))
        fix[opt.t2pos].append(salu('s_cselect_b32 s%d, 0x7f800000, s%d' % (S_T2, S_T)))
    if opt.stamp:
        fix[0].append(raw('s_memtime s[%d:%d]' % (S_TS, S_TS + 1)))
        fix[3].append(raw('s_memrealtime s[68:69]'))
        fix[B0 + 8].append(salu('s_lshr_b32 s%d, s%d, 14' % (S_IT, S_SO)))
        fix[B0 + 17].append(raw('v_cmp_eq_u32 s[64:65], s%d, v250' % S_IT))
        fix[B0 + 17].append(raw('v_mov_b32 v251, s%d' % S_TS))
        fix[B0 + 26].append(raw('v_cndmask_b32 v%d, v%d, v251, s[64:65]' % (V_STAMP, V_STAMP)))
        fix[B0 + 26].append(raw('v_mov_b32 v251, s68'))
        fix[B0 + 35].append(raw('v_cndmask_b32 v252, v252, v251, s[64:65]'))
    val = [[] for _ in range(NG)]
    entry_ops = []
    def used(g): return sum(x.cost for x in mem[g] + fix[g] + end[g] + val[g]) + (4 if g == NG - 1 else 0)
    for buf, pv0, treg, idx in ((1, B0, S_T, 0), (0, D0, S_T2, 1)):
        start = pv0 + (opt.start if buf else opt.start2)
        H = (max_tree(buf) + [I('v_cmp_lt_f32 vcc, s%d, v%d' % (treg, V_MX), 'valu', vr(V_MX), ['vcc'])]) if opt.max else []
        BR = [raw('s_cbranch_vccnz L_rare1_%d' % idx), label('L_ret1_%d' % idx)] if opt.max else []
        exps = []; cvts = []
        for q in range(4):
            for j in range(8):
                r = S(buf, q) + j
                exps.append(trans('v_exp_f32 v%d, v%d' % (r, r), vr(r), vr(r)))
            for j in range(4):
                r = S(buf, q) + 2 * j; d = S(buf, q) + j
                cvts.append(valu('v_cvt_pk_bf16_f32 v%d, v%d, v%d' % (d, r, r + 1), vr(r, 2), vr(d)))
        if opt.novalu: H, exps, cvts = [], [], []; BR = BR[1:]
        ne = 0; nc = 0; brdone = not BR; exp_gap = {}
        gi = 0
        span = opt.span
        while H or not brdone or ne < len(exps) or nc < len(cvts):
            ga = start + gi; g = ga % NG
            def put(x, is_e):
                val[g].append(x)
                if is_e and buf == 0 and ga < NG: entry_ops.append(x)
            def cvt_ready(): return nc < len(cvts) and ne >= 2 * nc + 2 and exp_gap[2 * nc + 1] < ga
            while True:
                free = (12 if g in opt.over else 8) - used(g)
                if free <= 0: break
                if H:
                    put(H.pop(0), False)
                    if not H: break
                    continue
                if not brdone:
                    for x in BR: put(x, False)
                    brdone = True; continue
                if free >= 8 and ne < len(exps) and not (cvt_ready() and ne - 2 * nc >= opt.lag):
                    put(exps[ne], True); exp_gap[ne] = ga; ne += 1; continue
                if cvt_ready():
                    put(cvts[nc], True); nc += 1; continue
                break
            gi += 1
            assert gi < 3 * HALF
        print('stream buf%d: start %d end %d (next PV starts at %d)' % (buf, start, start + gi - 1, pv0 + HALF))
    B = [label('L_loop')] + head
    for g in range(NG):
        if not opt.nomfma: B.append(mf[g])
        B += mem[g] + val[g] + fix[g] + end[g]
    P += entry_ops
    if opt.stamp: e(raw('s_memtime s[54:55]'))

    X = []
    def x(i): X.append(i)
    if opt.stamp: x(raw('s_memtime s[56:57]'))
    a = V_T + 4
    x(valu('v_and_b32 v%d, 15, v%d' % (a, V_TID), vr(V_TID), vr(a)))
    x(valu('v_lshlrev_b32 v%d, 8, v%d' % (a, a), vr(a), vr(a)))
    x(valu('v_bfe_u32 v%d, v%d, 4, 1' % (a + 1, V_TID), vr(V_TID), vr(a + 1)))
    x(valu('v_lshl_add_u32 v%d, v%d, 5, v%d' % (a, a + 1, a), vr(a, 2), vr(a)))
    x(valu('v_bfe_u32 v%d, v%d, 5, 1' % (a + 1, V_TID), vr(V_TID), vr(a + 1)))
    x(valu('v_lshl_add_u32 v%d, v%d, 4, v%d' % (a, a + 1, a), vr(a, 2), vr(a)))
    x(salu('s_lshl_b32 s%d, s%d, 14' % (S_TMP, S_W)))
    x(nop(1))
    for q in range(4):
        x(trans('v_rcp_f32 v%d, v%d' % (V_T + q, LA(q)), vr(LA(q)), vr(V_T + q)))
    spol = ' nt' if opt.snt else ''
    for q in range(4):
        for hb in range(2):
            o = O(q, 4 * hb)
            for r in range(16):
                x(valu('v_mul_f32 v%d, v%d, v%d' % (o + r, o + r, V_T + q), vr(o + r) + vr(V_T + q), vr(o + r)))
            for r in range(8):
                x(valu('v_cvt_pk_bf16_f32 v%d, v%d, v%d' % (o + r, o + 2 * r, o + 2 * r + 1), vr(o + 2 * r, 2), vr(o + r)))
            x(nop(1))
            for p in range(2):
                d = o + 4 * p
                x(perm('v_permlane16_swap_b32', d, d + 2)); x(perm('v_permlane16_swap_b32', d + 1, d + 3))
            for p in range(2):
                d = o + 4 * p
                x(I('buffer_store_dwordx4 %s, v%d, s[%d:%d], s%d offen offset:%d%s' % (vs(d, 4), a, S_O, S_O + 3, S_TMP, 128 * hb + 64 * p, spol), 'vmem', vr(d, 4) + vr(a)))
        if q < 3: x(salu('s_add_u32 s%d, s%d, 4096' % (S_TMP, S_TMP)))
    if opt.stamp:
        x(raw('s_waitcnt vmcnt(0)'))
        x(raw('s_memtime s[58:59]'))
        x(raw('s_memrealtime s[60:61]'))
        x(raw('s_getreg_b32 s62, hwreg(HW_REG_XCC_ID)'))
        x(raw('s_waitcnt lgkmcnt(0)'))
        for i, sr in enumerate((50, 52, 54, 56, 58, 60, 61, 62, 66, 67)):
            x(raw('v_writelane_b32 v%d, s%d, %d' % (V_STAMP, sr, 40 + i)))
        x(salu('s_mov_b32 s%d, s48' % S_WS)); x(salu('s_mov_b32 s%d, s49' % (S_WS + 1)))
        x(salu('s_mov_b32 s%d, %d' % (S_WS + 2, 512 * 1024))); x(salu('s_mov_b32 s%d, 0x20000' % (S_WS + 3)))
        x(salu('s_lshl_b32 s%d, s2, 10' % S_TMP))
        x(valu('v_lshlrev_b32 v%d, 2, v%d' % (a, V_TID), vr(V_TID), vr(a)))
        x(raw('buffer_store_dword v%d, v%d, s[%d:%d], s%d offen' % (V_STAMP, a, S_WS, S_WS + 3, S_TMP)))
        x(salu('s_add_u32 s%d, s%d, %d' % (S_TMP, S_TMP, 256 * 1024)))
        x(raw('buffer_store_dword v252, v%d, s[%d:%d], s%d offen' % (a, S_WS, S_WS + 3, S_TMP)))
    if opt.stamp == 2:
        x(raw('s_load_dwordx2 s[48:49], s[0:1], 32'))
        x(raw('s_waitcnt lgkmcnt(0)'))
        x(salu('s_mov_b32 s%d, s48' % S_WS)); x(salu('s_mov_b32 s%d, s49' % (S_WS + 1)))
        x(salu('s_mov_b32 s%d, 256' % (S_WS + 2))); x(salu('s_mov_b32 s%d, 0x20000' % (S_WS + 3)))
        x(raw('v_cmp_eq_u32 vcc, 0, v%d' % V_TID))
        x(raw('s_and_saveexec_b64 s[64:65], vcc'))
        x(raw('s_cbranch_execz L_end'))
        x(raw('v_mov_b32 v1, 0'))
        x(raw('v_mov_b32 v2, s60')); x(raw('buffer_atomic_umax v2, v1, s[%d:%d], 0 offen offset:0' % (S_WS, S_WS + 3)))
        x(salu('s_not_b32 s63, s66')); x(raw('v_mov_b32 v3, s63')); x(raw('buffer_atomic_umax v3, v1, s[%d:%d], 0 offen offset:4' % (S_WS, S_WS + 3)))
        x(salu('s_sub_u32 s63, s58, s50')); x(raw('v_mov_b32 v4, s63')); x(raw('buffer_atomic_add v4, v1, s[%d:%d], 0 offen offset:8' % (S_WS, S_WS + 3)))
        x(raw('buffer_atomic_umax v4, v1, s[%d:%d], 0 offen offset:28' % (S_WS, S_WS + 3)))
        x(salu('s_sub_u32 s63, s60, s66')); x(raw('v_mov_b32 v5, s63')); x(raw('buffer_atomic_add v5, v1, s[%d:%d], 0 offen offset:12' % (S_WS, S_WS + 3)))
        x(salu('s_sub_u32 s63, s52, s50')); x(raw('v_mov_b32 v6, s63')); x(raw('buffer_atomic_add v6, v1, s[%d:%d], 0 offen offset:16' % (S_WS, S_WS + 3)))
        x(salu('s_sub_u32 s63, s54, s50')); x(raw('v_mov_b32 v7, s63')); x(raw('buffer_atomic_add v7, v1, s[%d:%d], 0 offen offset:20' % (S_WS, S_WS + 3)))
        x(salu('s_sub_u32 s63, s56, s50')); x(raw('v_mov_b32 v8, s63')); x(raw('buffer_atomic_add v8, v1, s[%d:%d], 0 offen offset:24' % (S_WS, S_WS + 3)))
        x(salu('s_not_b32 s63, s60')); x(raw('v_mov_b32 v9, s63')); x(raw('buffer_atomic_umax v9, v1, s[%d:%d], 0 offen offset:32' % (S_WS, S_WS + 3)))
        x(raw('v_mov_b32 v10, s66')); x(raw('buffer_atomic_umax v10, v1, s[%d:%d], 0 offen offset:36' % (S_WS, S_WS + 3)))
    x(label('L_end'))
    x(raw('s_endpgm'))

    R = []
    if opt.max:
        for idx, buf in ((0, 1), (1, 0)):
            R.append(label('L_rare1_%d' % idx))
            for q in range(4):
                d = V_T + q
                R += rowmax(buf, q, d, V_T + 4)
                R.append(valu('v_max_f32 v%d, 0, v%d' % (d, d), vr(d), vr(d)))
                R.append(trans('v_exp_f32 v%d, -v%d' % (V_F + q, d), vr(d), vr(V_F + q)))
                for r in range(8):
                    R.append(valu('v_sub_f32 v%d, v%d, v%d' % (S(buf, q) + r, S(buf, q) + r, d), vr(S(buf, q) + r) + vr(d), vr(S(buf, q) + r)))
                for r in range(4):
                    R.append(valu('v_sub_f32 v%d, v%d, v%d' % (CI(q) + r, CI(q) + r, d), vr(CI(q) + r) + vr(d), vr(CI(q) + r)))
            R.append(raw('s_branch L_ret1_%d' % idx))
        for idx in range(2):
            R.append(label('L_rare2_%d' % idx))
            R.append(nop(15))
            for q in range(4):
                for i in list(range(32 * q, 32 * q + 32)) + [LA(q)]:
                    R.append(valu('v_mul_f32 v%d, v%d, v%d' % (i, i, V_F + q), vr(i) + vr(V_F + q), vr(i)))
            R.append(nop(1))
            R.append(raw('s_branch L_ret2_%d' % idx))
    return P, B, X, R, (mem, val, fix, end)

def states(i):
    if i.k == 'label': return 0
    if i.k == 'nop': return int(i.t.split()[1]) + 1
    return 1
def check(seq, name):
    errs = 0
    for n, c in enumerate(seq):
        if c.k in ('label', 'nop', 'salu', 'other'): continue
        dist = 0
        for p in reversed(seq[max(0, n - 40):n]):
            need = 0
            if p.k == 'mfma':
                if c.k == 'mfma':
                    if p.w & c.r: need = 8
                    if (p.w & c.c) and p.w != c.c: need = max(need, 6)
                else:
                    if p.w & (c.r | c.w): need = 8
                    if c.k in ('valu', 'trans', 'perm') and (p.c & c.w): need = max(need, 3)
            elif p.k in ('valu', 'trans', 'perm'):
                if c.k == 'mfma' and (p.w & (c.r | c.c)): need = 2
                if c.k == 'perm' and (p.w & c.r): need = 2
                if p.k == 'trans' and c.k in ('valu', 'perm', 'vmem', 'ds') and (p.w & c.r): need = max(need, 1)
            elif p.k == 'vmem' and 'store' in p.t:
                if c.k in ('valu', 'trans', 'perm') and (p.r & c.w): need = 2
            if need > dist:
                print('HAZARD[%s] need %d have %d: %s  ->  %s' % (name, need, dist, p.t, c.t)); errs += 1
            dist += states(p)
    return errs

def dataflow_check(B):
    seq = B + B
    last = {}
    errs = 0
    for n, c in enumerate(seq):
        if n >= len(B):
            if c.k == 'mfma' and not c.t.split(',')[2].strip().startswith('a'):
                for r in c.r:
                    if r.startswith('v') and 'cvt' not in last.get(r, ''):
                        print('DATAFLOW: P operand %s last written by %s at %s' % (r, last.get(r), c.t)); errs += 1
            if c.k == 'trans' and 'exp' in c.t:
                for r in c.r:
                    if 'mfma' not in last.get(r, ''): print('DATAFLOW: exp src %s last written by %s' % (r, last.get(r))); errs += 1
            if 'cvt_pk' in c.t:
                for r in c.r:
                    if 'exp' not in last.get(r, ''): print('DATAFLOW: cvt src %s last written by %s' % (r, last.get(r))); errs += 1
            if 'max3' in c.t:
                for r in c.r:
                    if 'mfma' not in last.get(r, '') and 'max' not in last.get(r, ''): print('DATAFLOW: max src %s last written by %s' % (r, last.get(r))); errs += 1
        for r in c.w: last[r] = c.t
    return errs

def main():
    ap = argparse.ArgumentParser()
    ap.add_argument('-o', default='k.s')
    ap.add_argument('--nt', type=int, default=1)
    ap.add_argument('--snt', type=int, default=0)
    ap.add_argument('--stamp', type=int, default=0)
    ap.add_argument('--nodma', type=int, default=0)
    ap.add_argument('--novalu', type=int, default=0)
    ap.add_argument('--nomfma', type=int, default=0)
    ap.add_argument('--max', type=int, default=1)
    ap.add_argument('--start', type=int, default=0)
    ap.add_argument('--span', type=int, default=68)
    ap.add_argument('--lag', type=int, default=100)
    ap.add_argument('--m0lead', type=int, default=1)
    ap.add_argument('--vdma', default='33,35,37,39')
    ap.add_argument('--kdma', default='101,103,105,107')
    ap.add_argument('--vpos', default='1,3,5,7,9,11,13,15,17,19,21,23,25,26,27,28')
    ap.add_argument('--kpos', default='0,2,4,6,8,9,10,11')
    ap.add_argument('--rot', default='131,131,132,132,133,133,134,134')
    ap.add_argument('--t2pos', type=int, default=97)
    ap.add_argument('--show', type=int, default=0)
    ap.add_argument('--over', default='-1')
    ap.add_argument('--start2', type=int, default=0)
    opt = ap.parse_args()
    for k in ('vdma', 'kdma', 'vpos', 'kpos', 'rot', 'over'): setattr(opt, k, [int(x) for x in getattr(opt, k).split(',')])
    P, B, X, R, dbg = build(opt)
    errs = check(P + B + B + X, 'main') + check(R, 'rare')
    if not (opt.novalu or opt.nomfma): errs += dataflow_check(B)
    mem, val, fix, end = dbg
    tot = 0
    for g in range(NG):
        l = [i for i in mem[g] + val[g] + fix[g] + end[g] if i.k != 'label']
        c = sum(i.cost for i in l) + (4 if g == NG - 1 else 0)
        tot += max(16, 8 + c)
        if opt.show: print(g, c, ' '.join(i.t.split()[0].replace('v_', '').replace('_f32', '') for i in l))
    print('model cycles/iter', tot)
    hdr = open('standalone__gqa_softmax__near_ridge.s.ref').read().split('\n')
    out = []
    for l in hdr:
        if l.startswith('; @launch'): break
        out.append(l)
    out.append('; @launch grid=(256,1,1) block=(256,1,1) lds=%d' % LDS_BYTES)
    out.append('.amdgcn_target "amdgcn-amd-amdhsa--gfx950"')
    out.append('.text')
    N = 'standalone__gqa_softmax__near_ridge_kernel'
    out += ['.globl ' + N, '.p2align 8', '.type %s,@function' % N, N + ':']
    for i in P: out.append(('' if i.k == 'label' else '    ') + i.t)
    out.append('.p2align 6')
    for i in B + X + R: out.append(('' if i.k == 'label' else '    ') + i.t)
    out += ['.section .rodata,"a"', '.p2align 6', '.amdhsa_kernel ' + N,
            '  .amdhsa_next_free_vgpr %d' % (256 + NA), '  .amdhsa_next_free_sgpr 72', '  .amdhsa_accum_offset 256',
            '  .amdhsa_group_segment_fixed_size 0', '  .amdhsa_kernarg_size 48', '  .amdhsa_user_sgpr_count 2',
            '  .amdhsa_user_sgpr_kernarg_segment_ptr 1', '  .amdhsa_system_sgpr_workgroup_id_x 1', '.end_amdhsa_kernel']
    open(opt.o, 'w').write('\n'.join(out) + '\n')
    print('wrote', opt.o, 'instrs: pro %d loop %d epi %d rare %d  errors %d' % (len(P), len(B), len(X), len(R), errs))
main()
```
